```python
import torch

def _softmax(x, axis=-1):
    return torch.softmax(x, dim=axis)
def _gelu(x):
    return torch.nn.functional.gelu(x, approximate="tanh")
def _silu(x):
    return torch.nn.functional.silu(x)
def _sigmoid(x):
    return torch.sigmoid(x)
def _layernorm(x, axis=-1, eps=1e-5):
    m = x.mean(dim=axis, keepdim=True)
    v = x.var(dim=axis, keepdim=True, unbiased=False)
    return (x - m) / torch.sqrt(v + eps)
def _scatter_add(tgt, idx, src, axis=0):
    return tgt.clone().index_add_(axis, idx, src)
def _segment_sum(src, seg, n):
    out = torch.zeros((n,) + src.shape[1:], dtype=src.dtype)
    return out.index_add_(0, seg, src)
def _pad(x, pw):
    flat = tuple(v for pair in reversed(pw) for v in pair)
    return torch.nn.functional.pad(x, flat)

kernel_name = 'gated_mix__ssm_conv_s5__dense_activation_mish__prompt'

def setup_inputs():

    _w = (lambda a: (lambda t: t.to(torch.bfloat16) if t.is_floating_point() else t)(torch.as_tensor(a)))
    def _A_setup():
        B, S, D = 1, 2048, 640
        P = D
        Lambda_re = -0.5 * (lambda _x: torch.exp(torch.as_tensor(_x)))((lambda *s: torch.randn(*s, dtype=torch.bfloat16) * 0.2)(P))
        Lambda_im = (lambda *s: torch.randn(*s, dtype=torch.bfloat16) * 0.2)(P) * 1.0
        B_re = (lambda *s: torch.randn(*s, dtype=torch.bfloat16) * 0.2)(P, D) * (D ** -0.5)
        B_im = (lambda *s: torch.randn(*s, dtype=torch.bfloat16) * 0.2)(P, D) * (D ** -0.5)
        C_re = (lambda *s: torch.randn(*s, dtype=torch.bfloat16) * 0.2)(D, P) * (P ** -0.5)
        C_im = (lambda *s: torch.randn(*s, dtype=torch.bfloat16) * 0.2)(D, P) * (P ** -0.5)
        log_dt = (lambda *s: torch.randn(*s, dtype=torch.bfloat16) * 0.2)(P) * 0.3 - 2.0
        Dskip = (lambda *s: torch.randn(*s, dtype=torch.bfloat16) * 0.05)(D)
        return {
            "x": _w((lambda *s: torch.randn(*s, dtype=torch.bfloat16) * 0.05)(B, S, D)),
            "Lambda_re": _w(Lambda_re),
            "Lambda_im": _w(Lambda_im),
            "B_re": _w(B_re),
            "B_im": _w(B_im),
            "C_re": _w(C_re),
            "C_im": _w(C_im),
            "log_dt": _w(log_dt),
            "Dskip": _w(Dskip),
        }
    _A_in = _A_setup()

    def _B_setup():
        B, S, D, F = 1, 2048, 640, 1536
        return {
            "x": _w((lambda *s: torch.randn(*s, dtype=torch.bfloat16) * 0.05)(B, S, D)),
            "w1": _w((lambda *s: torch.randn(*s, dtype=torch.bfloat16) * 3.2)(D, F) * (D ** -0.5)),
            "b1": _w((lambda *s: torch.randn(*s, dtype=torch.bfloat16) * 0.05)(F)),
            "w2": _w((lambda *s: torch.randn(*s, dtype=torch.bfloat16) * 0.05)(F, D) * (F ** -0.5)),
        }
    _B_in = _B_setup()

    return {
        "A_x": _A_in["x"],
        "A_Lambda_re": _A_in["Lambda_re"],
        "A_Lambda_im": _A_in["Lambda_im"],
        "A_B_re": _A_in["B_re"],
        "A_B_im": _A_in["B_im"],
        "A_C_re": _A_in["C_re"],
        "A_C_im": _A_in["C_im"],
        "A_log_dt": _A_in["log_dt"],
        "A_Dskip": _A_in["Dskip"],
        "B_x": _B_in["x"],
        "B_w1": _B_in["w1"],
        "B_b1": _B_in["b1"],
        "B_w2": _B_in["w2"],
        "gate_w": _w((lambda *s: torch.randn(*s, dtype=torch.bfloat16) * 0.05)(640) * 16.0),
    }

def reference(A_x, A_Lambda_re, A_Lambda_im, A_B_re, A_B_im, A_C_re, A_C_im, A_log_dt, A_Dskip, B_x, B_w1, B_b1, B_w2, gate_w):
    def _A_ref(x, Lambda_re, Lambda_im, B_re, B_im, C_re, C_im, log_dt, Dskip):
        Bsz, L, H = x.shape
        Lam = Lambda_re + 1j * Lambda_im
        Bmat = B_re + 1j * B_im
        Cmat = C_re + 1j * C_im
        dt = torch.exp(log_dt)
        Lam_bar = torch.exp(dt * Lam)
        B_bar = ((Lam_bar - 1.0) / Lam)[:, None] * Bmat
        Bu = torch.einsum("bld,pd->blp", x + 0j, B_bar)
        h = torch.zeros_like(Bu[:, 0, :])
        hs = []
        for t in range(L):
            h = Lam_bar[None, :] * h + Bu[:, t, :]
            hs.append(h)
        hseq = torch.stack(hs, 1)
        y = 2.0 * torch.einsum("blp,dp->bld", hseq, Cmat).real + x * Dskip[None, None, :]
        return y

    def _B_ref(x, w1, b1, w2):
        h = torch.einsum("bsd,df->bsf", x, w1) + b1
        sp = torch.log1p(torch.exp(-torch.abs(h))) + torch.where(h > 0, h, torch.zeros_like(h))
        act = h * torch.tanh(sp)
        return torch.einsum("bsf,fd->bsd", act, w2)

    x = A_x
    g = _sigmoid((x * gate_w).sum(-1, keepdims=True))
    a = _A_ref(x, A_Lambda_re, A_Lambda_im, A_B_re, A_B_im, A_C_re, A_C_im, A_log_dt, A_Dskip)
    b = _B_ref(x, B_w1, B_b1, B_w2)
    return g * a + (1 - g) * b
```

```python
import sys

NAME = "gated_mix__ssm_conv_s5__dense_activation_mish__prompt"

WS_AT = 0
WS_G = 0xB00000
WS_S = 0xB02000
WS_W2T = 0xC00000
WS_SIZE = 268435456

LOG2E = 0x3FB8AA3B
LN2 = 0x3F317218
INV2PI = 0x3E22F983


class Asm:
    def __init__(self):
        self.lines = []

    def __call__(self, s):
        self.lines.append("    " + s)

    def label(self, s):
        self.lines.append(s + ":")

    def raw(self, s):
        self.lines.append(s)

    def nop(self, n):
        while n > 0:
            k = min(n, 16)
            self(f"s_nop {k-1}")
            n -= k

    def text(self):
        return "\n".join(self.lines) + "\n"


def interleave(a, main, others, per=1):
    others = list(others)
    n = len(main)
    m = len(others)
    oi = 0
    for i, ins in enumerate(main):
        a(ins)
        want = ((i + 1) * m + n - 1) // n if n else m
        want = min(m, want)
        while oi < want:
            for l in others[oi]:
                a(l)
            oi += 1
    while oi < m:
        for l in others[oi]:
            a(l)
        oi += 1


def srd(a, d, base, nbytes):
    a(f"s_mov_b32 s{d}, s{base}")
    a(f"s_and_b32 s{d+1}, s{base+1}, 0xffff")
    a(f"s_mov_b32 s{d+2}, {nbytes}")
    a(f"s_mov_b32 s{d+3}, 0x00020000")


DPP_SWAP = "quad_perm:[1,0,3,2] row_mask:0xf bank_mask:0xf"


def gen_k1(a, opt):
    MISH_EXACT = opt.get("mish_exact", True)
    BUF = 38912
    OA, OBU, OW1 = 0, 16384, 26624
    L_E = 3 * BUF
    L_T = L_E + 5120
    L_W2 = L_T + 1280
    LDS1 = L_W2 + 8192

    SX, SB, SW1, SWS, SDBG, SW2 = 40, 44, 48, 52, 56, 60
    s_m, s_j, s_w = 64, 65, 66
    s_dA, s_dB, s_dW = 67, 68, 69
    s_kx, s_kw = 70, 71
    s_c = 72
    s_fill = 73
    s_rd = 74
    s_t0, s_t1, s_t2, s_t3 = 76, 77, 78, 79
    s_mask = 80
    s_to = 81

    v_lane = 1
    v_oA = [2, 3, 4, 5]
    v_oB = [6, 7, 8]
    v_oW = [9, 10, 11]
    v_rA = [12, 13]
    v_rB = [14, 15]
    v_rW = [16, 17]
    v_b1 = [18, 19, 20, 21, 22, 23]
    vt = list(range(24, 64))
    ACC = 64
    vE = list(range(152, 168))
    vS = list(range(168, 184))
    vx = list(range(184, 224))
    NV = 224

    def acc(n, s):
        b = ACC + n * 8 + s * 4
        return f"v[{b}:{b+3}]"

    def fa(q, s):
        b = q * 52 + s * 4
        return b

    def fb(q, n):
        b = q * 52 + 8 + n * 4
        return b

    a.label(f"k1_kernel")
    a("s_cmp_ge_u32 s2, 256")
    a("s_cbranch_scc1 k1_end")
    a("s_load_dwordx8 s[16:23], s[0:1], 0")
    a("s_load_dwordx2 s[24:25], s[0:1], 32")
    a("s_load_dwordx2 s[26:27], s[0:1], 56")
    a("s_load_dwordx8 s[28:35], s[0:1], 80")
    a("s_load_dwordx4 s[36:39], s[0:1], 120")
    a("v_lshrrev_b32 v2, 6, v0")
    a(f"v_and_b32 v{v_lane}, 63, v0")
    a("s_nop 0")
    a(f"v_readfirstlane_b32 s{s_w}, v2")
    MA = opt.get("k1_ma", 8)
    NB = 32 // MA
    XM = 16 // MA
    a(f"s_and_b32 s{s_t0}, s2, 7")
    a(f"s_lshr_b32 s{s_t1}, s2, 3")
    a(f"s_and_b32 s{s_t2}, s{s_t0}, {XM-1}")
    a(f"s_lshr_b32 s{s_t3}, s{s_t0}, {XM.bit_length()-1}")
    a(f"s_mul_i32 s{s_m}, s{s_t2}, {MA}")
    a(f"s_and_b32 s{s_t2}, s{s_t1}, {MA-1}")
    a(f"s_add_u32 s{s_m}, s{s_m}, s{s_t2}")
    a(f"s_mul_i32 s{s_j}, s{s_t3}, {NB}")
    a(f"s_lshr_b32 s{s_t2}, s{s_t1}, {MA.bit_length()-1}")
    a(f"s_add_u32 s{s_j}, s{s_j}, s{s_t2}")
    a("s_waitcnt lgkmcnt(0)")
    srd(a, SX, 16, 2621440)
    a(f"s_cmp_ge_u32 s{s_w}, 2")
    a(f"s_cselect_b32 s{s_t0}, s24, s22")
    a(f"s_cselect_b32 s{s_t1}, s25, s23")
    srd(a, SB, s_t0, 819200)
    srd(a, SW1, 28, 1966080)
    srd(a, SWS, 38, WS_SIZE)
    srd(a, SDBG, 36, 256)
    srd(a, SW2, 32, 1966080)

    L = f"v{v_lane}"
    t0, t1, t2, t3, t4, t5 = [f"v{x}" for x in vt[:6]]
    a(f"s_lshl_b32 s{s_t0}, s{s_m}, 7")
    a(f"s_lshl_b32 s{s_t1}, s{s_w}, 5")
    a(f"s_add_u32 s{s_t0}, s{s_t0}, s{s_t1}")
    a(f"v_lshrrev_b32 {t0}, 3, {L}")
    a(f"v_add_u32 {t0}, s{s_t0}, {t0}")
    a(f"v_mul_u32_u24 {t0}, 1280, {t0}")
    a(f"v_bfe_u32 {t1}, {L}, 4, 1")
    a(f"v_and_b32 {t2}, 7, {L}")
    a(f"v_xor_b32 {t1}, {t1}, {t2}")
    for i in range(4):
        a(f"v_xor_b32 {t2}, {i<<1}, {t1}")
        a(f"v_lshlrev_b32 {t2}, 4, {t2}")
        a(f"v_add_u32 {t2}, {t0}, {t2}")
        a(f"v_add_u32 v{v_oA[i]}, {i*8*1280}, {t2}")
    a(f"s_mul_i32 s{s_t0}, s{s_w}, 20")
    a(f"s_lshr_b32 s{s_t1}, s{s_w}, 1")
    a(f"s_mul_i32 s{s_t2}, s{s_t1}, 40")
    a(f"s_mul_i32 s{s_t3}, s{s_j}, 40")
    a(f"s_sub_u32 s{s_t3}, s{s_t3}, s{s_t2}")
    for i in range(3):
        a(f"v_lshrrev_b32 {t0}, 3, {L}")
        a(f"v_add_u32 {t0}, s{s_t0}, {t0}")
        if i:
            a(f"v_add_u32 {t0}, {8*i}, {t0}")
        a(f"v_and_b32 {t1}, 6, {t0}")
        a(f"v_or_b32 {t1}, s{s_t1}, {t1}")
        a(f"v_and_b32 {t2}, 7, {L}")
        a(f"v_xor_b32 {t1}, {t1}, {t2}")
        a(f"v_lshlrev_b32 {t1}, 4, {t1}")
        a(f"v_add_u32 {t0}, s{s_t3}, {t0}")
        a(f"v_mul_u32_u24 {t0}, 1280, {t0}")
        a(f"v_add_u32 v{v_oB[i]}, {t0}, {t1}")
    a(f"s_lshl_b32 s{s_t0}, s{s_w}, 4")
    a(f"s_mul_i32 s{s_t1}, s{s_j}, 192")
    for i in range(3):
        a(f"v_add_u32 {t0}, {i*64}, {L}")
        a(f"v_mul_u32_u24 {t1}, 0x5556, {t0}")
        a(f"v_lshrrev_b32 {t1}, 18, {t1}")
        a(f"v_mul_u32_u24 {t2}, 12, {t1}")
        a(f"v_sub_u32 {t2}, {t0}, {t2}")
        a(f"v_lshrrev_b32 {t3}, 1, {t2}")
        a(f"v_bfe_u32 {t4}, {t1}, 3, 1")
        a(f"v_sub_u32 {t3}, {t3}, {t4}")
        a(f"v_add_u32 {t4}, 6, {t3}")
        a(f"v_cmp_gt_i32 vcc, 0, {t3}")
        a("s_nop 1")
        a(f"v_cndmask_b32 {t3}, {t3}, {t4}, vcc")
        a(f"v_and_b32 {t2}, 1, {t2}")
        a(f"v_lshl_add_u32 {t3}, {t3}, 1, {t2}")
        a(f"v_lshlrev_b32 {t3}, 4, {t3}")
        a(f"v_add_u32 {t1}, s{s_t0}, {t1}")
        a(f"v_mul_u32_u24 {t1}, 3072, {t1}")
        a(f"v_add_u32 {t1}, s{s_t1}, {t1}")
        a(f"v_add_u32 v{v_oW[i]}, {t1}, {t3}")

    a(f"s_mul_i32 s{s_t0}, s{s_j}, 96")
    a(f"v_and_b32 {t0}, 15, {L}")
    a(f"v_add_u32 {t0}, s{s_t0}, {t0}")
    a(f"v_lshlrev_b32 {t0}, 1, {t0}")
    for jt in range(6):
        a(f"global_load_ushort v{v_b1[jt]}, {t0}, s[30:31] offset:{32*jt}")
    pc = vt[8:11]
    gx = vx[0:20]
    gw = vx[20:40]
    a(f"s_cmp_eq_u32 s{s_w}, 0")
    a("s_cbranch_scc0 k1_p_notw0")
    a(f"s_mul_i32 s{s_t0}, s{s_j}, 40")
    a(f"v_min_u32 {t0}, 39, {L}")
    a(f"v_add_u32 {t0}, s{s_t0}, {t0}")
    a(f"v_lshlrev_b32 {t0}, 1, {t0}")
    a(f"global_load_ushort v{pc[0]}, {t0}, s[18:19]")
    a(f"global_load_ushort v{pc[1]}, {t0}, s[20:21]")
    a(f"global_load_ushort v{pc[2]}, {t0}, s[26:27]")
    a.label("k1_p_notw0")
    a(f"s_cmp_ge_u32 s{s_w}, 2")
    a("s_cbranch_scc0 k1_p_notgate")
    a(f"v_subrev_u32 {t0}, 128, v0")
    a(f"v_lshrrev_b32 {t1}, 4, {t0}")
    a(f"s_lshl_b32 s{s_t0}, s{s_m}, 7")
    a(f"s_lshl_b32 s{s_t1}, s{s_j}, 3")
    a(f"s_add_u32 s{s_t0}, s{s_t0}, s{s_t1}")
    a(f"v_add_u32 {t1}, s{s_t0}, {t1}")
    a(f"v_mul_u32_u24 {t1}, 1280, {t1}")
    a(f"v_and_b32 {t0}, 15, {t0}")
    a(f"v_lshlrev_b32 {t0}, 4, {t0}")
    a(f"v_add_u32 {t1}, {t1}, {t0}")
    for i in range(5):
        a(f"global_load_dwordx4 v[{gx[4*i]}:{gx[4*i+3]}], {t1}, s[16:17] offset:{256*i}")
        a(f"global_load_dwordx4 v[{gw[4*i]}:{gw[4*i+3]}], {t0}, s[34:35] offset:{256*i}")
    a.label("k1_p_notgate")

    a(f"s_lshl_b32 s{s_dA}, s{s_w}, 12")
    a(f"s_mul_i32 s{s_dB}, s{s_w}, 2560")
    a(f"s_add_u32 s{s_dB}, s{s_dB}, {OBU}")
    a(f"s_mul_i32 s{s_dW}, s{s_w}, 3072")
    a(f"s_add_u32 s{s_dW}, s{s_dW}, {OW1}")
    a(f"s_mov_b32 s{s_kx}, 0")
    a(f"s_mov_b32 s{s_kw}, 0")
    a(f"s_mov_b32 s{s_fill}, 0")

    def dma_groups():
        g = []
        for i in range(4):
            g.append([f"s_add_u32 s{s_t0}, s{s_dA}, s{s_fill}",
                      f"s_add_u32 m0, s{s_t0}, {i*1024}",
                      "s_nop 0",
                      f"buffer_load_dwordx4 v{v_oA[i]}, s[{SX}:{SX+3}], s{s_kx} offen lds"])
        for i in range(3):
            pre = [f"s_add_u32 s{s_t0}, s{s_dB}, s{s_fill}",
                   f"s_add_u32 m0, s{s_t0}, {i*1024}"]
            if i == 2:
                g.append(pre + ["s_mov_b64 exec, 0xffffffff",
                                f"buffer_load_dwordx4 v{v_oB[i]}, s[{SB}:{SB+3}], s{s_kx} offen lds",
                                "s_mov_b64 exec, -1"])
            else:
                g.append(pre + ["s_nop 0",
                                f"buffer_load_dwordx4 v{v_oB[i]}, s[{SB}:{SB+3}], s{s_kx} offen lds"])
        for i in range(3):
            g.append([f"s_add_u32 s{s_t0}, s{s_dW}, s{s_fill}",
                      f"s_add_u32 m0, s{s_t0}, {i*1024}",
                      "s_nop 0",
                      f"buffer_load_dwordx4 v{v_oW[i]}, s[{SW1}:{SW1+3}], s{s_kw} offen lds"])
        g.append([f"s_add_u32 s{s_kx}, s{s_kx}, 128",
                  f"s_add_u32 s{s_kw}, s{s_kw}, {64*3072}",
                  f"s_add_u32 s{s_fill}, s{s_fill}, {BUF}",
                  f"s_cmp_ge_u32 s{s_fill}, {3*BUF}",
                  f"s_cselect_b32 s{s_fill}, 0, s{s_fill}"])
        return g

    for c in range(3):
        for grp in dma_groups():
            for l in grp:
                a(l)
    a("s_cmp_ge_u32 s2, 240")
    a("s_cbranch_scc1 k1_now2a")
    a(f"s_mul_i32 s{s_t0}, s2, 0x199a")
    a(f"s_lshr_b32 s{s_t0}, s{s_t0}, 16")
    a(f"s_mul_i32 s{s_t1}, s{s_t0}, 10")
    a(f"s_sub_u32 s{s_t1}, s2, s{s_t1}")
    a(f"s_lshl_b32 s{s_t0}, s{s_t0}, 6")
    a(f"s_lshl_b32 s{s_t2}, s{s_w}, 4")
    a(f"s_add_u32 s{s_t0}, s{s_t0}, s{s_t2}")
    a(f"s_mul_i32 s{s_t0}, s{s_t0}, 1280")
    a(f"s_lshl_b32 s{s_t1}, s{s_t1}, 7")
    a(f"s_add_u32 s{s_t0}, s{s_t0}, s{s_t1}")
    a(f"v_lshrrev_b32 {t0}, 3, {L}")
    a(f"v_mul_u32_u24 {t0}, 1280, {t0}")
    a(f"v_and_b32 {t1}, 7, {L}")
    a(f"v_lshl_add_u32 {t0}, {t1}, 4, {t0}")
    a(f"s_lshl_b32 s{s_t2}, s{s_w}, 11")
    a(f"s_add_u32 m0, s{s_t2}, {L_W2}")
    a("s_nop 0")
    a(f"buffer_load_dwordx4 {t0}, s[{SW2}:{SW2+3}], s{s_t0} offen lds")
    a(f"s_add_u32 m0, s{s_t2}, {L_W2+1024}")
    a(f"s_add_u32 s{s_t0}, s{s_t0}, {8*1280}")
    a(f"buffer_load_dwordx4 {t0}, s[{SW2}:{SW2+3}], s{s_t0} offen lds")
    a("s_branch k1_now2b")
    a.label("k1_now2a")
    a.label("k1_now2b")

    a(f"v_and_b32 {t0}, 15, {L}")
    a(f"v_lshrrev_b32 {t1}, 4, {L}")
    a(f"v_lshrrev_b32 {t2}, 2, {t0}")
    a(f"v_and_b32 {t3}, 3, {t0}")
    a(f"v_lshl_add_u32 {t3}, {t2}, 3, {t3}")
    a(f"s_lshl_b32 s{s_t0}, s{s_w}, 5")
    a(f"v_add_u32 {t3}, s{s_t0}, {t3}")
    a(f"v_lshlrev_b32 {t3}, 7, {t3}")
    a(f"v_bfe_u32 {t4}, {t0}, 1, 1")
    a(f"v_lshl_add_u32 {t4}, {t2}, 1, {t4}")
    a(f"v_xor_b32 {t4}, {t4}, {t1}")
    a(f"v_lshl_add_u32 v{v_rA[0]}, {t4}, 4, {t3}")
    a(f"v_xor_b32 v{v_rA[1]}, 64, v{v_rA[0]}")
    a(f"v_and_b32 {t2}, 1, {t0}")
    a(f"v_lshrrev_b32 {t3}, 1, {t0}")
    a(f"v_mul_u32_u24 {t4}, 40, {t2}")
    a(f"v_add_u32 {t4}, {t4}, {t3}")
    a(f"v_lshlrev_b32 {t4}, 7, {t4}")
    a(f"v_and_b32 {t3}, 6, {t3}")
    a(f"v_or_b32 {t3}, {t3}, {t2}")
    a(f"v_xor_b32 {t3}, {t3}, {t1}")
    a(f"v_lshl_add_u32 {t4}, {t3}, 4, {t4}")
    a(f"v_add_u32 v{v_rB[0]}, {OBU}, {t4}")
    a(f"v_xor_b32 v{v_rB[1]}, 64, v{v_rB[0]}")
    a(f"v_lshrrev_b32 {t2}, 2, {t0}")
    a(f"v_lshl_add_u32 {t2}, {t1}, 3, {t2}")
    a(f"v_mul_u32_u24 {t2}, 192, {t2}")
    a(f"v_and_b32 {t3}, 3, {t0}")
    a(f"v_lshl_add_u32 {t2}, {t3}, 3, {t2}")
    a(f"v_add_u32 {t2}, {OW1}, {t2}")
    a(f"v_and_b32 {t3}, 1, {t1}")
    a(f"v_lshl_add_u32 v{v_rW[0]}, {t3}, 5, {t2}")
    a(f"v_mul_u32_u24 {t3}, 160, {t3}")
    a(f"v_sub_u32 {t3}, 160, {t3}")
    a(f"v_add_u32 v{v_rW[1]}, {t2}, {t3}")
    a(f"s_mov_b32 s{s_rd}, 0")

    for r in range(88):
        a(f"v_mov_b32 v{ACC+r}, 0")

    a(f"s_cmp_eq_u32 s{s_w}, 0")
    a("s_cbranch_scc0 k1_c_notw0")
    a("s_waitcnt vmcnt(30)")
    a.label("k1_c_w0")
    lre, lim, ldt = [f"v{x}" for x in pc]
    c = [f"v{x}" for x in vt[11:31]]
    a(f"v_lshlrev_b32 {lre}, 16, {lre}")
    a(f"v_lshlrev_b32 {lim}, 16, {lim}")
    a(f"v_lshlrev_b32 {ldt}, 16, {ldt}")
    a(f"s_mov_b32 s{s_t0}, {LOG2E:#x}")
    a(f"s_mov_b32 s{s_t1}, {INV2PI:#x}")
    a(f"v_mul_f32 {ldt}, s{s_t0}, {ldt}")
    a(f"v_exp_f32 {ldt}, {ldt}")
    a("s_nop 0")
    a(f"v_cvt_pk_bf16_f32 {ldt}, {ldt}, {ldt}")
    a(f"v_lshlrev_b32 {ldt}, 16, {ldt}")
    a(f"v_mul_f32 {c[0]}, {ldt}, {lre}")
    a(f"v_mul_f32 {c[1]}, {ldt}, {lim}")
    a(f"v_mul_f32 {c[0]}, s{s_t0}, {c[0]}")
    a(f"v_exp_f32 {c[0]}, {c[0]}")
    a(f"v_mul_f32 {c[1]}, s{s_t1}, {c[1]}")
    a(f"v_fract_f32 {c[1]}, {c[1]}")
    a(f"v_cos_f32 {c[2]}, {c[1]}")
    a(f"v_sin_f32 {c[3]}, {c[1]}")
    a("s_nop 0")
    a(f"v_mul_f32 {c[4]}, {c[0]}, {c[2]}")
    a(f"v_mul_f32 {c[5]}, {c[0]}, {c[3]}")
    a(f"v_mul_f32 {c[12]}, {lre}, {lre}")
    a(f"v_fmac_f32 {c[12]}, {lim}, {lim}")
    a(f"v_rcp_f32 {c[13]}, {c[12]}")
    a("s_nop 0")
    a(f"v_fma_f32 {c[14]}, -{c[12]}, {c[13]}, 1.0")
    a(f"v_fmac_f32 {c[13]}, {c[14]}, {c[13]}")
    a(f"v_add_f32 {c[14]}, -1.0, {c[4]}")
    a(f"v_mul_f32 {c[6]}, {c[14]}, {lre}")
    a(f"v_fmac_f32 {c[6]}, {c[5]}, {lim}")
    a(f"v_mul_f32 {c[6]}, {c[6]}, {c[13]}")
    a(f"v_mul_f32 {c[7]}, {c[5]}, {lre}")
    a(f"v_fma_f32 {c[7]}, -{c[14]}, {lim}, {c[7]}")
    a(f"v_mul_f32 {c[7]}, {c[7]}, {c[13]}")

    def csq(dr, di, sr, si):
        a(f"v_mul_f32 {c[15]}, {si}, {si}")
        a(f"v_fma_f32 {dr if dr != sr else c[16]}, {sr}, {sr}, -{c[15]}")
        a(f"v_mul_f32 {c[15]}, {sr}, {si}")
        a(f"v_add_f32 {di}, {c[15]}, {c[15]}")
        if dr == sr:
            a(f"v_mov_b32 {dr}, {c[16]}")
    csq(c[8], c[9], c[4], c[5])
    csq(c[8], c[9], c[8], c[9])
    csq(c[8], c[9], c[8], c[9])
    csq(c[10], c[11], c[8], c[9])
    csq(c[10], c[11], c[10], c[11])
    csq(c[10], c[11], c[10], c[11])
    csq(c[10], c[11], c[10], c[11])
    a(f"v_lshlrev_b32 {c[15]}, 5, {L}")
    a(f"v_add_u32 {c[15]}, {L_T}, {c[15]}")
    a(f"v_cmp_gt_u32 vcc, 40, {L}")
    a(f"s_and_saveexec_b64 s[{s_t2}:{s_t2+1}], vcc")
    b4 = vt[11 + 4]
    assert b4 % 2 == 1 or True
    a(f"ds_write_b64 {c[15]}, v[{b4}:{b4+1}]" if b4 % 2 == 0 else "")
    if b4 % 2 == 0:
        a(f"ds_write_b64 {c[15]}, v[{b4+2}:{b4+3}] offset:8")
        a(f"ds_write_b64 {c[15]}, v[{b4+4}:{b4+5}] offset:16")
        a(f"ds_write_b64 {c[15]}, v[{b4+6}:{b4+7}] offset:24")
    else:
        for q in range(8):
            a(f"ds_write_b32 {c[15]}, v{b4+q} offset:{4*q}")
    a(f"s_mov_b64 exec, s[{s_t2}:{s_t2+1}]")
    a.label("k1_c_notw0")

    a(f"s_cmp_ge_u32 s{s_w}, 2")
    a("s_cbranch_scc0 k1_g_skip")
    a("s_waitcnt vmcnt(30)")
    accg = f"v{vt[11]}"
    u = [f"v{x}" for x in vt[12:20]]
    a(f"v_mov_b32 {accg}, 0")
    for i in range(20):
        xr, wr = f"v{gx[i]}", f"v{gw[i]}"
        a(f"v_lshlrev_b32 {u[0]}, 16, {xr}")
        a(f"v_and_b32 {u[1]}, 0xffff0000, {xr}")
        a(f"v_lshlrev_b32 {u[2]}, 16, {wr}")
        a(f"v_and_b32 {u[3]}, 0xffff0000, {wr}")
        a(f"v_mul_f32 {u[0]}, {u[0]}, {u[2]}")
        a(f"v_mul_f32 {u[1]}, {u[1]}, {u[3]}")
        a(f"v_cvt_pk_bf16_f32 {u[0]}, {u[0]}, {u[1]}")
        a(f"v_lshlrev_b32 {u[1]}, 16, {u[0]}")
        a(f"v_and_b32 {u[0]}, 0xffff0000, {u[0]}")
        a(f"v_add_f32 {accg}, {accg}, {u[1]}")
        a(f"v_add_f32 {accg}, {accg}, {u[0]}")
    for sh in (8, 4, 2, 1):
        a("s_nop 1")
        a(f"v_add_f32_dpp {accg}, {accg}, {accg} row_ror:{sh} row_mask:0xf bank_mask:0xf")
    a("s_nop 0")
    a(f"v_cvt_pk_bf16_f32 {accg}, {accg}, {accg}")
    a(f"v_lshlrev_b32 {accg}, 16, {accg}")
    a(f"v_mul_f32 {accg}, 0xbfb8aa3b, {accg}")
    a(f"v_exp_f32 {accg}, {accg}")
    a("s_nop 0")
    a(f"v_add_f32 {accg}, 1.0, {accg}")
    a(f"v_rcp_f32 {accg}, {accg}")
    a("s_nop 0")
    a(f"v_cvt_pk_bf16_f32 {accg}, {accg}, {accg}")
    a(f"v_lshlrev_b32 {accg}, 16, {accg}")
    a(f"v_subrev_u32 {u[0]}, 128, v0")
    a(f"v_lshrrev_b32 {u[0]}, 4, {u[0]}")
    a(f"s_lshl_b32 s{s_t0}, s{s_m}, 7")
    a(f"s_lshl_b32 s{s_t1}, s{s_j}, 3")
    a(f"s_add_u32 s{s_t0}, s{s_t0}, s{s_t1}")
    a(f"v_add_u32 {u[0]}, s{s_t0}, {u[0]}")
    a(f"v_lshlrev_b32 {u[0]}, 2, {u[0]}")
    a(f"v_add_u32 {u[0]}, {WS_G:#x}, {u[0]}")
    a(f"v_and_b32 {u[1]}, 15, {L}")
    a(f"v_cmp_eq_u32 vcc, 0, {u[1]}")
    a(f"s_and_saveexec_b64 s[{s_t2}:{s_t2+1}], vcc")
    a(f"buffer_store_dword {accg}, {u[0]}, s[{SWS}:{SWS+3}], 0 offen")
    a(f"s_mov_b64 exec, s[{s_t2}:{s_t2+1}]")
    a.label("k1_g_skip")

    def reads(q, ks):
        g = []
        for s in range(2):
            b = fa(q, s)
            g.append([f"ds_read_b128 a[{b}:{b+3}], v{v_rA[ks]} offset:{s*512}"])
        for n in range(5):
            b = fb(q, n)
            g.append([f"ds_read_b128 a[{b}:{b+3}], v{v_rB[ks]} offset:{n*1024}"])
        for n in range(6):
            b = fb(q, 5 + n)
            for h in range(2):
                if n < 5:
                    g.append([f"ds_read_b64_tr_b16 a[{b+2*h}:{b+2*h+1}], v{v_rW[0]} offset:{n*32 + ks*6144 + h*768}"])
                else:
                    g.append([f"ds_read_b64_tr_b16 a[{b+2*h}:{b+2*h+1}], v{v_rW[1]} offset:{ks*6144 + h*768}"])
        return g

    def mfmas(q):
        m = []
        for n in range(11):
            for s in range(2):
                A = fa(q, s)
                B = fb(q, n)
                m.append(f"v_mfma_f32_16x16x32_bf16 {acc(n,s)}, a[{A}:{A+3}], a[{B}:{B+3}], {acc(n,s)}")
        return m

    def addr_update():
        g = [[f"s_add_u32 s{s_t1}, s{s_rd}, {BUF}",
              f"s_cmp_ge_u32 s{s_t1}, {3*BUF}",
              f"s_cselect_b32 s{s_t1}, 0, s{s_t1}",
              f"s_sub_u32 s{s_t2}, s{s_t1}, s{s_rd}",
              f"s_mov_b32 s{s_rd}, s{s_t1}"]]
        for r in v_rA + v_rB + v_rW:
            g.append([f"v_add_u32 v{r}, s{s_t2}, v{r}"])
        return g

    a("s_waitcnt vmcnt(20) lgkmcnt(0)")
    a("s_barrier")
    for grp in reads(0, 0):
        for l in grp:
            a(l)

    def body(c_static, dma, vm, last):
        a("s_waitcnt lgkmcnt(0)")
        interleave(a, mfmas(0), reads(1, 1))
        if not last:
            a(f"s_waitcnt vmcnt({vm}) lgkmcnt(0)")
            a("s_barrier")
            oth = []
            if dma:
                oth += dma_groups()
            oth += addr_update()
            oth += reads(0, 0)
            interleave(a, mfmas(1), oth)
        else:
            a("s_waitcnt lgkmcnt(0)")
            interleave(a, mfmas(1), [])

    a(f"s_mov_b32 s{s_c}, 0")
    a.label("k1_loop")
    body(None, True, 10, False)
    a(f"s_add_u32 s{s_c}, s{s_c}, 1")
    a(f"s_cmp_lt_u32 s{s_c}, 7")
    a("s_cbranch_scc1 k1_loop")
    body(7, False, 10, False)
    body(8, False, 0, False)
    body(9, False, 0, True)
    a.nop(10)

    ca = vx[0:5]
    cb = vx[5:10]
    ka = vx[10:15]
    kb = vx[15:20]
    tq = vx[20:40]
    a(f"v_bfe_u32 {t0}, {L}, 1, 3")
    a(f"v_lshlrev_b32 {t0}, 5, {t0}")
    a(f"v_add_u32 {t0}, {L_T}, {t0}")
    for jt in range(5):
        a(f"ds_read_b128 v[{tq[4*jt]}:{tq[4*jt+3]}], {t0} offset:{jt*256}")
    a(f"v_and_b32 {t1}, 1, {L}")
    a(f"v_cmp_eq_u32 vcc, 1, {t1}")
    a("s_waitcnt lgkmcnt(0)")
    for jt in range(5):
        lr, li, kr, ki = [f"v{tq[4*jt+q]}" for q in range(4)]
        a(f"v_mov_b32 v{ca[jt]}, {lr}")
        a(f"v_sub_f32 {t2}, 0, {li}")
        a(f"v_cndmask_b32 v{cb[jt]}, {t2}, {li}, vcc")
        a(f"v_add_f32 {t2}, {kr}, {kr}")
        a(f"v_sub_f32 {t3}, 0, {t2}")
        a(f"v_cndmask_b32 v{ka[jt]}, {t2}, {t3}, vcc")
        a(f"v_mul_f32 v{kb[jt]}, -2.0, {ki}")
    for i in range(1, 8):
        for jt in range(5):
            a(f"v_fmac_f32 v{ACC+jt*8+i}, v{ca[jt]}, v{ACC+jt*8+i-1}")
        for jt in range(5):
            a(f"v_fmac_f32_dpp v{ACC+jt*8+i}, v{ACC+jt*8+i-1}, v{cb[jt]} {DPP_SWAP}")
    a(f"v_lshrrev_b32 {t0}, 4, {L}")
    a(f"s_lshl_b32 s{s_t0}, s{s_w}, 2")
    a(f"v_add_u32 {t0}, s{s_t0}, {t0}")
    a(f"v_mul_u32_u24 {t0}, 320, {t0}")
    a(f"v_and_b32 {t1}, 15, {L}")
    a(f"v_lshl_add_u32 {t0}, {t1}, 2, {t0}")
    vEaddr = vt[6]
    a(f"v_add_u32 v{vEaddr}, {L_E}, {t0}")
    for jt in range(5):
        a(f"ds_write_b32 v{vEaddr}, v{ACC+jt*8+7} offset:{jt*64}")
    a("s_waitcnt lgkmcnt(0)")
    a("s_barrier")
    vcol, vP, vT, a8, b8, a128, b128, vCaddr = vt[7:15]
    a(f"s_cmp_ge_u32 s{s_w}, 2")
    a("s_cbranch_scc1 k1_e3_skip")
    a(f"s_lshl_b32 s{s_t0}, s{s_w}, 6")
    a(f"v_add_u32 v{vcol}, s{s_t0}, {L}")
    a(f"v_min_u32 v{vcol}, 79, v{vcol}")
    a(f"v_lshrrev_b32 {t0}, 1, v{vcol}")
    a(f"v_lshlrev_b32 {t0}, 5, {t0}")
    a(f"v_add_u32 {t0}, {L_T}, {t0}")
    a(f"ds_read_b128 v[{tq[0]}:{tq[3]}], {t0} offset:16")
    a(f"v_lshlrev_b32 v{vCaddr}, 2, v{vcol}")
    a(f"v_add_u32 v{vCaddr}, {L_E}, v{vCaddr}")
    for G in range(16):
        a(f"ds_read_b32 v{vE[G]}, v{vCaddr} offset:{G*320}")
    a(f"v_and_b32 {t1}, 1, {L}")
    a(f"v_cmp_eq_u32 vcc, 1, {t1}")
    a("s_waitcnt lgkmcnt(0)")
    a(f"v_mov_b32 v{a8}, v{tq[0]}")
    a(f"v_sub_f32 {t2}, 0, v{tq[1]}")
    a(f"v_cndmask_b32 v{b8}, {t2}, v{tq[1]}, vcc")
    a(f"v_mov_b32 v{a128}, v{tq[2]}")
    a(f"v_sub_f32 {t2}, 0, v{tq[3]}")
    a(f"v_cndmask_b32 v{b128}, {t2}, v{tq[3]}, vcc")
    a(f"v_mov_b32 v{vP}, v{vE[0]}")
    for G in range(1, 16):
        a(f"v_fma_f32 v{vT}, v{a8}, v{vP}, v{vE[G]}")
        a("s_nop 0")
        a(f"v_fmac_f32_dpp v{vT}, v{vP}, v{b8} {DPP_SWAP}")
        a(f"v_mov_b32 v{vP}, v{vT}")
        a("s_nop 0")
    a(f"s_lshl_b32 s{s_t0}, s{s_m}, 4")
    a(f"s_add_u32 s{s_t0}, s{s_t0}, s{s_j}")
    a(f"s_mul_i32 s{s_t0}, s{s_t0}, 320")
    a(f"s_add_u32 s{s_t0}, s{s_t0}, {WS_S:#x}")
    a(f"v_lshlrev_b32 {t0}, 2, v{vcol}")
    a(f"s_lshl_b32 s{s_t1}, s{s_w}, 6")
    a(f"v_add_u32 {t1}, s{s_t1}, {L}")
    a(f"v_cmp_gt_u32 vcc, 80, {t1}")
    a(f"s_and_saveexec_b64 s[{s_t2}:{s_t2+1}], vcc")
    a(f"buffer_store_dword v{vP}, {t0}, s[{SWS}:{SWS+3}], s{s_t0} offen sc1")
    a(f"s_mov_b64 exec, s[{s_t2}:{s_t2+1}]")
    a("s_waitcnt vmcnt(0)")
    a(f"s_lshl_b32 s{s_t0}, s{s_m}, 1")
    a(f"s_add_u32 s{s_t0}, s{s_t0}, s{s_w}")
    a(f"s_lshl_b32 s{s_t0}, 1, s{s_t0}")
    a(f"v_mov_b32 {t0}, s{s_t0}")
    a(f"s_lshl_b32 s{s_t1}, s{s_j}, 2")
    a(f"v_mov_b32 {t1}, s{s_t1}")
    a("s_mov_b64 exec, 1")
    a(f"buffer_atomic_or {t0}, {t1}, s[{SDBG}:{SDBG+3}], 0 offen")
    a("s_mov_b64 exec, -1")
    a.label("k1_e3_skip")

    vSt = vt[15]
    a(f"s_mul_i32 s{s_t0}, s{s_j}, 96")
    a(f"s_add_u32 s{s_t0}, s{s_t0}, 1280")
    a(f"v_and_b32 {t0}, 15, {L}")
    a(f"v_add_u32 {t0}, s{s_t0}, {t0}")
    a(f"v_lshlrev_b32 {t0}, 12, {t0}")
    a(f"s_lshl_b32 s{s_t0}, s{s_m}, 7")
    a(f"s_lshl_b32 s{s_t1}, s{s_w}, 5")
    a(f"s_add_u32 s{s_t0}, s{s_t0}, s{s_t1}")
    a(f"v_lshrrev_b32 {t1}, 4, {L}")
    a(f"v_lshlrev_b32 {t1}, 3, {t1}")
    a(f"v_add_u32 {t1}, s{s_t0}, {t1}")
    vTt = vt[16]
    a(f"v_lshlrev_b32 v{vTt}, 1, {t1}")
    a(f"v_add_u32 v{vSt}, {t0}, v{vTt}")
    a(f"s_mov_b32 s{s_t0}, {LOG2E:#x}")
    a(f"s_mov_b32 s{s_t1}, {LN2:#x}")
    w = [f"v{x}" for x in vx[20:40]]
    outp = vt[18:22]
    for jt in range(6):
        n = 5 + jt
        a(f"v_lshlrev_b32 v{v_b1[jt]}, 16, v{v_b1[jt]}")
        for pr in range(4):
            x0 = f"v{ACC+n*8+2*pr}"
            x1 = f"v{ACC+n*8+2*pr+1}"
            h0, h1, e0, e1, l0, l1, s0_, s1_, p0 = w[0:9]
            bb = f"v{v_b1[jt]}"
            a(f"v_cvt_pk_bf16_f32 {p0}, {x0}, {x1}")
            a(f"v_lshlrev_b32 {h0}, 16, {p0}")
            a(f"v_and_b32 {h1}, 0xffff0000, {p0}")
            a(f"v_add_f32 {h0}, {h0}, {bb}")
            a(f"v_add_f32 {h1}, {h1}, {bb}")
            a(f"v_cvt_pk_bf16_f32 {p0}, {h0}, {h1}")
            a(f"v_lshlrev_b32 {h0}, 16, {p0}")
            a(f"v_and_b32 {h1}, 0xffff0000, {p0}")
            a(f"v_mul_f32 {e0}, s{s_t0}, -abs({h0})")
            a(f"v_mul_f32 {e1}, s{s_t0}, -abs({h1})")
            a(f"v_exp_f32 {e0}, {e0}")
            a(f"v_exp_f32 {e1}, {e1}")
            if MISH_EXACT:
                a("s_nop 0")
                a(f"v_cvt_pk_bf16_f32 {p0}, {e0}, {e1}")
                a(f"v_lshlrev_b32 {e0}, 16, {p0}")
                a(f"v_and_b32 {e1}, 0xffff0000, {p0}")
                a(f"v_add_f32 {l0}, 1.0, {e0}")
                a(f"v_add_f32 {l1}, 1.0, {e1}")
                a(f"v_log_f32 {l0}, {l0}")
                a(f"v_log_f32 {l1}, {l1}")
                a(f"v_mov_b32 {s0_}, 0x3eaaaaab")
                a(f"v_fma_f32 {s1_}, {e1}, {s0_}, -0.5")
                a(f"v_fma_f32 {s0_}, {e0}, {s0_}, -0.5")
                a(f"v_fma_f32 {s0_}, {e0}, {s0_}, 1.0")
                a(f"v_fma_f32 {s1_}, {e1}, {s1_}, 1.0")
                a(f"v_mul_f32 {s0_}, {e0}, {s0_}")
                a(f"v_mul_f32 {s1_}, {e1}, {s1_}")
                a(f"v_mul_f32 {l0}, s{s_t1}, {l0}")
                a(f"v_mul_f32 {l1}, s{s_t1}, {l1}")
                a(f"v_cmp_gt_f32 vcc, 0x3c000000, {e0}")
                a(f"v_cmp_gt_f32 s[{s_t2}:{s_t2+1}], 0x3c000000, {e1}" if False else f"s_nop 1")
                a(f"v_cndmask_b32 {l0}, {l0}, {s0_}, vcc")
                a(f"v_cmp_gt_f32 vcc, 0x3c000000, {e1}")
                a("s_nop 1")
                a(f"v_cndmask_b32 {l1}, {l1}, {s1_}, vcc")
                a(f"v_cvt_pk_bf16_f32 {p0}, {l0}, {l1}")
                a(f"v_lshlrev_b32 {l0}, 16, {p0}")
                a(f"v_and_b32 {l1}, 0xffff0000, {p0}")
                a(f"v_max_f32 {s0_}, 0, {h0}")
                a(f"v_max_f32 {s1_}, 0, {h1}")
                a(f"v_add_f32 {l0}, {l0}, {s0_}")
                a(f"v_add_f32 {l1}, {l1}, {s1_}")
                a(f"v_cvt_pk_bf16_f32 {p0}, {l0}, {l1}")
                a(f"v_lshlrev_b32 {l0}, 16, {p0}")
                a(f"v_and_b32 {l1}, 0xffff0000, {p0}")
                a(f"v_mul_f32 {e0}, 0x4038aa3b, {l0}")
                a(f"v_mul_f32 {e1}, 0x4038aa3b, {l1}")
                a(f"v_exp_f32 {e0}, {e0}")
                a(f"v_exp_f32 {e1}, {e1}")
                a(f"v_mul_f32 {s0_}, {l0}, {l0}")
                a(f"v_mul_f32 {s1_}, {l1}, {l1}")
                a(f"v_add_f32 {e0}, 1.0, {e0}")
                a(f"v_add_f32 {e1}, 1.0, {e1}")
                a(f"v_rcp_f32 {e0}, {e0}")
                a(f"v_rcp_f32 {e1}, {e1}")
                a(f"v_mul_f32 {s0_}, 0xbeaaaaab, {s0_}")
                a(f"v_mul_f32 {s1_}, 0xbeaaaaab, {s1_}")
                a(f"v_fma_f32 {s0_}, {s0_}, {l0}, {l0}")
                a(f"v_fma_f32 {s1_}, {s1_}, {l1}, {l1}")
                a(f"v_fma_f32 {e0}, {e0}, -2.0, 1.0")
                a(f"v_fma_f32 {e1}, {e1}, -2.0, 1.0")
                a(f"v_cmp_gt_f32 vcc, 0x3d000000, {l0}")
                a("s_nop 1")
                a(f"v_cndmask_b32 {e0}, {e0}, {s0_}, vcc")
                a(f"v_cmp_gt_f32 vcc, 0x3d000000, {l1}")
                a("s_nop 1")
                a(f"v_cndmask_b32 {e1}, {e1}, {s1_}, vcc")
                a(f"v_cvt_pk_bf16_f32 {p0}, {e0}, {e1}")
                a(f"v_lshlrev_b32 {e0}, 16, {p0}")
                a(f"v_and_b32 {e1}, 0xffff0000, {p0}")
                a(f"v_mul_f32 {e0}, {h0}, {e0}")
                a(f"v_mul_f32 {e1}, {h1}, {e1}")
                a(f"v_cvt_pk_bf16_f32 v{outp[pr]}, {e0}, {e1}")
            else:
                a(f"v_cmp_le_f32 vcc, 0, {h0}")
                a(f"v_cmp_le_f32 s[{s_t2}:{s_t2+1}], 0, {h1}")
                a(f"v_mul_f32 {l0}, {e0}, {e0}")
                a(f"v_mul_f32 {l1}, {e1}, {e1}")
                a(f"v_cndmask_b32 {s0_}, {l0}, 1.0, vcc")
                a(f"v_cndmask_b32 {s1_}, {l1}, 1.0, s[{s_t2}:{s_t2+1}]")
                a(f"v_cndmask_b32 {l0}, 1.0, {l0}, vcc")
                a(f"v_cndmask_b32 {l1}, 1.0, {l1}, s[{s_t2}:{s_t2+1}]")
                a(f"v_fma_f32 {s0_}, {e0}, 2.0, {s0_}")
                a(f"v_fma_f32 {s1_}, {e1}, 2.0, {s1_}")
                a(f"v_fma_f32 {l0}, {l0}, 2.0, {s0_}")
                a(f"v_fma_f32 {l1}, {l1}, 2.0, {s1_}")
                a(f"v_rcp_f32 {l0}, {l0}")
                a(f"v_rcp_f32 {l1}, {l1}")
                a(f"v_mul_f32 {s0_}, {s0_}, {h0}")
                a(f"v_mul_f32 {s1_}, {s1_}, {h1}")
                a(f"v_mul_f32 {e0}, {s0_}, {l0}")
                a(f"v_mul_f32 {e1}, {s1_}, {l1}")
                a(f"v_cvt_pk_bf16_f32 v{outp[pr]}, {e0}, {e1}")
        assert outp[0] % 2 == 1 or True
        a(f"buffer_store_dwordx4 v[{outp[0]}:{outp[3]}], v{vSt}, s[{SWS}:{SWS+3}], 0 offen")
        if jt < 5:
            a(f"v_add_u32 v{vSt}, {16*4096}, v{vSt}")
            a("s_nop 1")

    a("s_cmp_ge_u32 s2, 240")
    a("s_cbranch_scc1 k1_now2c")
    a(f"v_and_b32 {t0}, 15, {L}")
    a(f"v_lshrrev_b32 {t1}, 4, {L}")
    a(f"v_lshrrev_b32 {t2}, 2, {t0}")
    a(f"v_lshl_add_u32 {t2}, {t1}, 3, {t2}")
    a(f"v_lshlrev_b32 {t2}, 7, {t2}")
    a(f"v_and_b32 {t3}, 3, {t0}")
    a(f"v_lshl_add_u32 {t2}, {t3}, 3, {t2}")
    a(f"s_lshl_b32 s{s_t0}, s{s_w}, 5")
    a(f"s_add_u32 s{s_t0}, s{s_t0}, {L_W2}")
    a(f"v_add_u32 {t2}, s{s_t0}, {t2}")
    wq = vx[32:40]
    for hf in range(2):
        for h in range(2):
            a(f"ds_read_b64_tr_b16 v[{wq[4*hf+2*h]}:{wq[4*hf+2*h+1]}], {t2} offset:{hf*4096 + h*512}")
    a(f"s_mul_i32 s{s_t0}, s2, 0x199a")
    a(f"s_lshr_b32 s{s_t0}, s{s_t0}, 16")
    a(f"s_mul_i32 s{s_t1}, s{s_t0}, 10")
    a(f"s_sub_u32 s{s_t1}, s2, s{s_t1}")
    a(f"s_lshl_b32 s{s_t1}, s{s_t1}, 6")
    a(f"s_lshl_b32 s{s_t2}, s{s_w}, 4")
    a(f"s_add_u32 s{s_t1}, s{s_t1}, s{s_t2}")
    a(f"v_add_u32 {t0}, s{s_t1}, {t0}")
    a(f"v_mul_u32_u24 {t0}, 3072, {t0}")
    a(f"v_lshl_add_u32 {t0}, {t1}, 4, {t0}")
    a(f"s_lshl_b32 s{s_t0}, s{s_t0}, 7")
    a(f"s_add_u32 s{s_t0}, s{s_t0}, {WS_W2T:#x}")
    a("s_waitcnt lgkmcnt(0)")
    a(f"buffer_store_dwordx4 v[{wq[0]}:{wq[3]}], {t0}, s[{SWS}:{SWS+3}], s{s_t0} offen")
    a(f"buffer_store_dwordx4 v[{wq[4]}:{wq[7]}], {t0}, s[{SWS}:{SWS+3}], s{s_t0} offen offset:64")
    a.label("k1_now2c")

    a(f"s_cmp_ge_u32 s{s_w}, 2")
    a("s_cbranch_scc1 k1_e5_skip")
    a(f"v_mov_b32 v{vP}, 0")
    a(f"s_cmp_eq_u32 s{s_m}, 0")
    a("s_cbranch_scc1 k1_e5_chain2")
    a(f"s_lshl_b32 s{s_t0}, s{s_m}, 1")
    a(f"s_lshl_b32 s{s_t0}, 1, s{s_t0}")
    a(f"s_sub_u32 s{s_t0}, s{s_t0}, 1")
    a(f"s_lshl_b32 s{s_t1}, 0x55555555, s{s_w}")
    a(f"s_and_b32 s{s_mask}, s{s_t0}, s{s_t1}")
    a(f"s_lshl_b32 s{s_t1}, s{s_j}, 2")
    a(f"v_mov_b32 {t1}, s{s_t1}")
    a(f"s_mov_b32 s{s_to}, 0")
    a.label("k1_poll")
    a(f"buffer_load_dword {t0}, {t1}, s[{SDBG}:{SDBG+3}], 0 offen sc1")
    a("s_waitcnt vmcnt(0)")
    a(f"v_readfirstlane_b32 s{s_t0}, {t0}")
    a("s_nop 3")
    a(f"s_and_b32 s{s_t0}, s{s_t0}, s{s_mask}")
    a(f"s_cmp_eq_u32 s{s_t0}, s{s_mask}")
    a("s_cbranch_scc1 k1_poll_done")
    a(f"s_add_u32 s{s_to}, s{s_to}, 1")
    a(f"s_cmp_lt_u32 s{s_to}, 0x100000")
    a("s_cbranch_scc1 k1_poll")
    a.label("k1_poll_done")
    a(f"s_mul_i32 s{s_t0}, s{s_j}, 320")
    a(f"s_add_u32 s{s_t0}, s{s_t0}, {WS_S:#x}")
    a(f"v_lshlrev_b32 {t0}, 2, v{vcol}")
    for mp in range(15):
        a(f"buffer_load_dword v{vS[mp]}, {t0}, s[{SWS}:{SWS+3}], s{s_t0} offen sc1")
        if mp < 14:
            a(f"s_add_u32 s{s_t0}, s{s_t0}, {16*320}")
    a("s_waitcnt vmcnt(0)")
    for mp in range(15):
        a(f"v_fma_f32 v{vT}, v{a128}, v{vP}, v{vS[mp]}")
        a("s_nop 0")
        a(f"v_fmac_f32_dpp v{vT}, v{vP}, v{b128} {DPP_SWAP}")
        a(f"v_mov_b32 v{vP}, v{vT}")
        if mp < 14:
            a(f"s_cmp_eq_u32 s{s_m}, {mp+1}")
            a("s_cbranch_scc1 k1_e5_chain2")
    a.label("k1_e5_chain2")
    a(f"s_lshl_b32 s{s_t1}, s{s_w}, 6")
    a(f"v_add_u32 {t1}, s{s_t1}, {L}")
    a(f"v_cmp_gt_u32 vcc, 80, {t1}")
    a(f"s_and_saveexec_b64 s[{s_t2}:{s_t2+1}], vcc")
    for G in range(16):
        a(f"ds_write_b32 v{vCaddr}, v{vP} offset:{G*320}")
        if G < 15:
            a(f"v_fma_f32 v{vT}, v{a8}, v{vP}, v{vE[G]}")
            a("s_nop 0")
            a(f"v_fmac_f32_dpp v{vT}, v{vP}, v{b8} {DPP_SWAP}")
            a(f"v_mov_b32 v{vP}, v{vT}")
            a("s_nop 0")
    a(f"s_mov_b64 exec, s[{s_t2}:{s_t2+1}]")
    a.label("k1_e5_skip")
    a("s_waitcnt lgkmcnt(0)")
    a("s_barrier")
    cc = vx[20:25]
    ct = vx[25:30]
    for jt in range(5):
        a(f"ds_read_b32 v{cc[jt]}, v{vEaddr} offset:{jt*64}")
    a("s_waitcnt lgkmcnt(0)")
    for i in range(8):
        for jt in range(5):
            a(f"v_mul_f32 v{ct[jt]}, v{ca[jt]}, v{cc[jt]}")
        for jt in range(5):
            a(f"v_fmac_f32_dpp v{ct[jt]}, v{cc[jt]}, v{cb[jt]} {DPP_SWAP}")
        for jt in range(5):
            a(f"v_add_f32 v{ACC+jt*8+i}, v{ACC+jt*8+i}, v{ct[jt]}")
        cc, ct = ct, cc
    a(f"v_and_b32 {t0}, 1, {L}")
    a(f"v_mul_u32_u24 {t0}, 640, {t0}")
    a(f"v_bfe_u32 {t1}, {L}, 1, 3")
    a(f"v_add_u32 {t0}, {t0}, {t1}")
    a(f"s_mul_i32 s{s_t0}, s{s_j}, 40")
    a(f"v_add_u32 {t0}, s{s_t0}, {t0}")
    a(f"v_lshlrev_b32 {t0}, 12, {t0}")
    a(f"v_add_u32 v{vSt}, {t0}, v{vTt}")
    o8 = vx[30:38]
    for jt in range(5):
        for i in range(8):
            a(f"v_mul_f32 v{o8[i]}, v{ka[jt]}, v{ACC+jt*8+i}")
        for i in range(8):
            a(f"v_fmac_f32_dpp v{o8[i]}, v{ACC+jt*8+i}, v{kb[jt]} {DPP_SWAP}")
        for pr in range(4):
            a(f"v_cvt_pk_bf16_f32 v{outp[pr]}, v{o8[2*pr]}, v{o8[2*pr+1]}")
        a(f"buffer_store_dwordx4 v[{outp[0]}:{outp[3]}], v{vSt}, s[{SWS}:{SWS+3}], 0 offen")
        if jt < 4:
            a(f"v_add_u32 v{vSt}, {8*4096}, v{vSt}")
            a("s_nop 1")
    a.label("k1_end")
    a("s_endpgm")
    return dict(lds=LDS1, nv=NV, na=104)


def gen_k2(a, opt):
    BUF = 36864
    OA, OB = 0, 16384
    NBUF = 3
    LDS2 = NBUF * BUF
    SWS, SB, SOUT = 40, 44, 48
    s_mt, s_nt, s_w = 64, 65, 66
    s_dA, s_dB = 67, 68
    s_ka, s_kb = 70, 71
    s_c = 72
    s_fill = 73
    s_rd = 74
    s_t0, s_t1, s_t2, s_t3 = 75, 76, 77, 78
    s_ci = 79

    v_lane = 1
    v_oA = [2, 3, 4, 5]
    v_oB = [6, 7, 8, 9, 10]
    v_oB2 = [11, 12, 13, 14, 15]
    v_rA = 16
    v_rB = [17, 18, 19, 20]
    vt = list(range(24, 48))
    ACC = 48
    ACA = 68
    vxr = list(range(88, 98))
    vds = list(range(98, 108))
    v_g = 108
    NV = 112

    def acc(n):
        return f"v[{ACC+4*n}:{ACC+4*n+3}]"

    def fa(q, s):
        return q * 48 + s * 24

    def fb(q, s, n):
        return q * 48 + s * 24 + 4 + n * 4

    L = f"v{v_lane}"
    t0, t1, t2, t3, t4, t5 = [f"v{x}" for x in vt[:6]]
    a.label("k2_kernel")
    a("s_cmp_ge_u32 s2, 256")
    a("s_cbranch_scc1 k2_end")
    a("s_load_dwordx2 s[16:17], s[0:1], 0")
    a("s_load_dwordx2 s[18:19], s[0:1], 40")
    a("s_load_dwordx2 s[20:21], s[0:1], 48")
    a("s_load_dwordx2 s[22:23], s[0:1], 64")
    a("s_load_dwordx2 s[24:25], s[0:1], 112")
    a("s_load_dwordx2 s[26:27], s[0:1], 128")
    a("v_lshrrev_b32 v2, 6, v0")
    a(f"v_and_b32 v{v_lane}, 63, v0")
    a("s_nop 0")
    a(f"v_readfirstlane_b32 s{s_w}, v2")
    MA = opt.get("k2_ma", 4)
    NB = 32 // MA
    XM = 32 // MA
    a(f"s_and_b32 s{s_t0}, s2, 7")
    a(f"s_lshr_b32 s{s_t1}, s2, 3")
    a(f"s_and_b32 s{s_t2}, s{s_t0}, {XM-1}")
    a(f"s_lshr_b32 s{s_t3}, s{s_t0}, {XM.bit_length()-1}")
    a(f"s_mul_i32 s{s_mt}, s{s_t2}, {MA}")
    a(f"s_and_b32 s{s_t2}, s{s_t1}, {MA-1}")
    a(f"s_add_u32 s{s_mt}, s{s_mt}, s{s_t2}")
    a(f"s_mul_i32 s{s_nt}, s{s_t3}, {NB}")
    a(f"s_lshr_b32 s{s_t2}, s{s_t1}, {MA.bit_length()-1}")
    a(f"s_add_u32 s{s_nt}, s{s_nt}, s{s_t2}")
    a("s_waitcnt lgkmcnt(0)")
    srd(a, SWS, 26, WS_SIZE)
    srd(a, SB, 18, 819200)
    srd(a, SOUT, 24, 5242880)

    a(f"s_lshl_b32 s{s_t0}, s{s_w}, 5")
    a(f"v_lshrrev_b32 {t0}, 3, {L}")
    a(f"v_add_u32 {t0}, s{s_t0}, {t0}")
    a(f"v_lshlrev_b32 {t0}, 12, {t0}")
    a(f"s_lshl_b32 s{s_t1}, s{s_mt}, 7")
    a(f"v_add_u32 {t0}, s{s_t1}, {t0}")
    a(f"v_bfe_u32 {t1}, {L}, 1, 2")
    a(f"v_bfe_u32 {t2}, {L}, 4, 1")
    a(f"v_xor_b32 {t1}, {t1}, {t2}")
    a(f"v_and_b32 {t2}, 1, {L}")
    for i in range(4):
        a(f"v_xor_b32 {t3}, {(i&1)<<1}, {t1}")
        a(f"v_lshl_add_u32 {t3}, {t3}, 1, {t2}")
        a(f"v_lshl_add_u32 {t3}, {t3}, 4, {t0}")
        a(f"v_add_u32 v{v_oA[i]}, {i*8*4096}, {t3}")
    a(f"s_mul_i32 s{s_t0}, s{s_w}, 20")
    a(f"s_mul_i32 s{s_t1}, s{s_nt}, 80")
    for i in range(5):
        a(f"v_lshrrev_b32 {t0}, 4, {L}")
        a(f"v_add_u32 {t0}, s{s_t0}, {t0}")
        if i:
            a(f"v_add_u32 {t0}, {4*i}, {t0}")
        a(f"v_xor_b32 {t1}, {t0}, {L}")
        a(f"v_and_b32 {t1}, 15, {t1}")
        a(f"v_lshlrev_b32 {t1}, 4, {t1}")
        a(f"v_add_u32 {t0}, s{s_t1}, {t0}")
        a(f"v_mul_u32_u24 {t2}, 1280, {t0}")
        a(f"v_add_u32 v{v_oB[i]}, {t2}, {t1}")
        a(f"v_mul_u32_u24 {t2}, 3072, {t0}")
        a(f"v_add_u32 {t2}, {t2}, {t1}")
        a(f"v_add_u32 v{v_oB2[i]}, {WS_W2T:#x}, {t2}")
    a(f"s_lshl_b32 s{s_dA}, s{s_w}, 12")
    a(f"s_mul_i32 s{s_dB}, s{s_w}, 5120")
    a(f"s_add_u32 s{s_dB}, s{s_dB}, {OB}")
    a(f"s_mov_b32 s{s_ka}, 0")
    a(f"s_mov_b32 s{s_kb}, 0")
    a(f"s_mov_b32 s{s_fill}, 0")
    a(f"s_mov_b32 s{s_ci}, 0")

    uid = [0]

    def dma_groups():
        g = []
        u = uid[0]
        uid[0] += 1
        for i in range(4):
            g.append([f"s_add_u32 s{s_t0}, s{s_dA}, s{s_fill}",
                      f"s_add_u32 m0, s{s_t0}, {i*1024}",
                      "s_nop 0",
                      f"buffer_load_dwordx4 v{v_oA[i]}, s[{SWS}:{SWS+3}], s{s_ka} offen lds"])
        for i in range(5):
            g.append([f"s_add_u32 s{s_t0}, s{s_dB}, s{s_fill}",
                      f"s_add_u32 m0, s{s_t0}, {i*1024}",
                      "s_nop 0",
                      f"buffer_load_dwordx4 v{v_oB[i]}, s[{SB}:{SB+3}], s{s_kb} offen lds"])
        adv = [f"s_add_u32 s{s_ka}, s{s_ka}, {128*4096}",
               f"s_add_u32 s{s_kb}, s{s_kb}, 256",
               f"s_add_u32 s{s_fill}, s{s_fill}, {BUF}",
               f"s_cmp_ge_u32 s{s_fill}, {NBUF*BUF}",
               f"s_cselect_b32 s{s_fill}, 0, s{s_fill}",
               f"s_add_u32 s{s_ci}, s{s_ci}, 1",
               f"s_cmp_eq_u32 s{s_ci}, 5",
               f"s_cbranch_scc0 k2_sw5_{u}",
               f"s_mov_b32 s{SB}, s20",
               f"s_and_b32 s{SB+1}, s21, 0xffff",
               f"s_mov_b32 s{s_kb}, 0",
               f"k2_sw5_{u}:",
               f"s_cmp_eq_u32 s{s_ci}, 10",
               f"s_cbranch_scc0 k2_sw10_{u}",
               f"s_mov_b32 s{SB}, s26",
               f"s_and_b32 s{SB+1}, s27, 0xffff",
               f"s_mov_b32 s{SB+2}, {WS_SIZE}",
               f"s_mov_b32 s{s_kb}, 0"]
        for i in range(5):
            adv.append(f"v_mov_b32 v{v_oB[i]}, v{v_oB2[i]}")
        adv.append(f"k2_sw10_{u}:")
        g.append(adv)
        return g

    a(f"s_lshl_b32 s{s_t0}, s{s_mt}, 6")
    a(f"s_lshl_b32 s{s_t1}, s{s_w}, 4")
    a(f"s_add_u32 s{s_t0}, s{s_t0}, s{s_t1}")
    a(f"v_and_b32 {t0}, 15, {L}")
    a(f"v_add_u32 {t0}, s{s_t0}, {t0}")
    v_t = vt[6]
    v_d = vt[7]
    a(f"v_mov_b32 v{v_t}, {t0}")
    a(f"s_mul_i32 s{s_t1}, s{s_nt}, 80")
    a(f"v_lshrrev_b32 {t1}, 4, {L}")
    a(f"v_lshlrev_b32 {t1}, 2, {t1}")
    a(f"v_add_u32 v{v_d}, s{s_t1}, {t1}")
    a(f"v_mul_u32_u24 {t2}, 1280, {t0}")
    a(f"v_lshl_add_u32 {t2}, v{v_d}, 1, {t2}")
    a(f"v_lshlrev_b32 {t3}, 1, v{v_d}")
    for jt in range(5):
        a(f"global_load_dwordx2 v[{vxr[2*jt]}:{vxr[2*jt+1]}], {t2}, s[16:17] offset:{32*jt}")
        a(f"global_load_dwordx2 v[{vds[2*jt]}:{vds[2*jt+1]}], {t3}, s[22:23] offset:{32*jt}")
    a(f"v_lshlrev_b32 {t4}, 2, {t0}")
    a(f"v_add_u32 {t4}, {WS_G:#x}, {t4}")
    a(f"buffer_load_dword v{v_g}, {t4}, s[{SWS}:{SWS+3}], 0 offen")

    for c in range(NBUF):
        for grp in dma_groups():
            for l in grp:
                if l.endswith(":"):
                    a.raw(l)
                else:
                    a(l)

    a(f"v_and_b32 {t0}, 15, {L}")
    a(f"v_lshrrev_b32 {t1}, 4, {L}")
    a(f"v_lshrrev_b32 {t2}, 2, {t0}")
    a(f"v_lshl_add_u32 {t3}, {t1}, 3, {t2}")
    a(f"v_lshlrev_b32 {t3}, 7, {t3}")
    a(f"v_bfe_u32 {t4}, {t2}, 1, 1")
    a(f"v_and_b32 {t5}, 1, {t1}")
    a(f"v_lshl_add_u32 {t4}, {t5}, 1, {t4}")
    a(f"v_xor_b32 {t4}, s{s_w}, {t4}")
    a(f"v_lshl_add_u32 {t3}, {t4}, 5, {t3}")
    a(f"v_and_b32 {t4}, 3, {t0}")
    a(f"v_lshl_add_u32 v{v_rA}, {t4}, 3, {t3}")
    a(f"v_lshlrev_b32 {t3}, 8, {t0}")
    a(f"v_add_u32 {t3}, {OB}, {t3}")
    for s in range(4):
        a(f"v_add_u32 {t4}, {4*s}, {t1}")
        a(f"v_xor_b32 {t4}, {t4}, {t0}")
        a(f"v_lshl_add_u32 v{v_rB[s]}, {t4}, 4, {t3}")
    a(f"s_mov_b32 s{s_rd}, 0")
    for r in range(20):
        a(f"v_mov_b32 v{ACC+r}, 0")

    def reads(q, half):
        g = []
        for s2 in range(2):
            s = half * 2 + s2
            b = fa(q, s2)
            for h in range(2):
                g.append([f"ds_read_b64_tr_b16 a[{b+2*h}:{b+2*h+1}], v{v_rA} offset:{s*4096 + h*512}"])
            for n in range(5):
                b = fb(q, s2, n)
                g.append([f"ds_read_b128 a[{b}:{b+3}], v{v_rB[s]} offset:{n*4096}"])
        return g

    def mfmas(q):
        m = []
        for s2 in range(2):
            for n in range(5):
                A = fa(q, s2)
                B = fb(q, s2, n)
                m.append(f"v_mfma_f32_16x16x32_bf16 {acc(n)}, a[{B}:{B+3}], a[{A}:{A+3}], {acc(n)}")
        return m

    def addr_update():
        g = [[f"s_add_u32 s{s_t1}, s{s_rd}, {BUF}",
              f"s_cmp_ge_u32 s{s_t1}, {NBUF*BUF}",
              f"s_cselect_b32 s{s_t1}, 0, s{s_t1}",
              f"s_sub_u32 s{s_t2}, s{s_t1}, s{s_rd}",
              f"s_mov_b32 s{s_rd}, s{s_t1}"]]
        for r in [v_rA] + v_rB:
            g.append([f"v_add_u32 v{r}, s{s_t2}, v{r}"])
        return g

    def emit_groups_inter(main, oth):
        n = len(main)
        m = len(oth)
        oi = 0
        for i, ins in enumerate(main):
            a(ins)
            want = min(m, ((i + 1) * m + n - 1) // n)
            while oi < want:
                for l in oth[oi]:
                    if l.endswith(":"):
                        a.raw(l)
                    else:
                        a(l)
                oi += 1

    a(f"s_waitcnt vmcnt({9*(NBUF-1)})")
    a("s_barrier")
    for grp in reads(0, 0):
        for l in grp:
            a(l)

    def body(dma, vm, last):
        a("s_waitcnt lgkmcnt(0)")
        emit_groups_inter(mfmas(0), reads(1, 1))
        if not last:
            a(f"s_waitcnt vmcnt({vm}) lgkmcnt(0)")
            a("s_barrier")
            oth = []
            if dma:
                oth += dma_groups()
            oth += addr_update()
            oth += reads(0, 0)
            emit_groups_inter(mfmas(1), oth)
        else:
            a("s_waitcnt lgkmcnt(0)")
            emit_groups_inter(mfmas(1), [])

    a(f"s_mov_b32 s{s_c}, 0")
    a.label("k2_loop")
    body(True, 9 * (NBUF - 2), False)
    a(f"s_add_u32 s{s_c}, s{s_c}, 1")
    a(f"s_cmp_eq_u32 s{s_c}, 10")
    a("s_cbranch_scc0 k2_nosw")
    a.nop(10)
    for r in range(20):
        a(f"v_mov_b32 v{ACA+r}, v{ACC+r}")
    for r in range(20):
        a(f"v_mov_b32 v{ACC+r}, 0")
    a("s_nop 1")
    a.label("k2_nosw")
    a(f"s_cmp_lt_u32 s{s_c}, {22-NBUF}")
    a("s_cbranch_scc1 k2_loop")
    for c in range(22 - NBUF, 22):
        rem = 21 - c
        body(False, 9 * max(0, rem - 1), rem == 0)
    a.nop(10)
    g = f"v{v_g}"
    omg = f"v{vt[8]}"
    a(f"v_sub_f32 {omg}, 1.0, {g}")
    a(f"v_cvt_pk_bf16_f32 {omg}, {omg}, {omg}")
    a(f"v_lshlrev_b32 {omg}, 16, {omg}")
    a(f"v_mul_u32_u24 {t0}, 2560, v{v_t}")
    a(f"v_lshl_add_u32 {t0}, v{v_d}, 2, {t0}")
    u = [f"v{x}" for x in vt[10:22]]
    for jt in range(5):
        for pr in range(2):
            xr = f"v{vxr[2*jt+pr]}"
            dr = f"v{vds[2*jt+pr]}"
            a(f"v_lshlrev_b32 {u[0]}, 16, {xr}")
            a(f"v_and_b32 {u[1]}, 0xffff0000, {xr}")
            a(f"v_lshlrev_b32 {u[2]}, 16, {dr}")
            a(f"v_and_b32 {u[3]}, 0xffff0000, {dr}")
            a(f"v_mul_f32 {u[0]}, {u[0]}, {u[2]}")
            a(f"v_mul_f32 {u[1]}, {u[1]}, {u[3]}")
            a(f"v_cvt_pk_bf16_f32 {u[0]}, {u[0]}, {u[1]}")
            a(f"v_lshlrev_b32 {u[1]}, 16, {u[0]}")
            a(f"v_and_b32 {u[0]}, 0xffff0000, {u[0]}")
            a0 = f"v{ACA+4*jt+2*pr}"
            a1 = f"v{ACA+4*jt+2*pr+1}"
            b0 = f"v{ACC+4*jt+2*pr}"
            b1 = f"v{ACC+4*jt+2*pr+1}"
            a(f"v_add_f32 {a0}, {a0}, {u[1]}")
            a(f"v_add_f32 {a1}, {a1}, {u[0]}")
            a(f"v_cvt_pk_bf16_f32 {u[2]}, {b0}, {b1}")
            a(f"v_lshlrev_b32 {u[3]}, 16, {u[2]}")
            a(f"v_and_b32 {u[2]}, 0xffff0000, {u[2]}")
            a(f"v_mul_f32 {u[3]}, {omg}, {u[3]}")
            a(f"v_mul_f32 {u[2]}, {omg}, {u[2]}")
            a(f"v_cvt_pk_bf16_f32 {u[2]}, {u[3]}, {u[2]}")
            a(f"v_lshlrev_b32 {u[3]}, 16, {u[2]}")
            a(f"v_and_b32 {u[2]}, 0xffff0000, {u[2]}")
            a(f"v_mul_f32 {a0}, {g}, {a0}")
            a(f"v_mul_f32 {a1}, {g}, {a1}")
            a(f"v_add_f32 {a0}, {a0}, {u[3]}")
            a(f"v_add_f32 {a1}, {a1}, {u[2]}")
        a(f"buffer_store_dwordx4 v[{ACA+4*jt}:{ACA+4*jt+3}], {t0}, s[{SOUT}:{SOUT+3}], 0 offen offset:{64*jt}")
    a.label("k2_end")
    a("s_endpgm")
    return dict(lds=LDS2, nv=NV, na=96)


HEADER = open("cdna_kernels/" + NAME + ".s.ref").read().split("; Override")[0]


def generate(opt):
    a1 = Asm()
    i1 = gen_k1(a1, opt)
    a2 = Asm()
    i2 = gen_k2(a2, opt)
    out = HEADER
    out += f"; @launch kernel=k1_kernel grid=(256,1,1) block=(256,1,1) lds={i1['lds']}\n"
    out += f"; @launch kernel=k2_kernel grid=(256,1,1) block=(256,1,1) lds={i2['lds']}\n"
    out += '.amdgcn_target "amdgcn-amd-amdhsa--gfx950"\n.text\n'
    for nm, aa in (("k1_kernel", a1), ("k2_kernel", a2)):
        out += f".globl {nm}\n.p2align 8\n.type {nm},@function\n"
        out += aa.text()
    out += '.section .rodata,"a"\n'
    for nm, info in (("k1_kernel", i1), ("k2_kernel", i2)):
        acc_off = (info["nv"] + 3) // 4 * 4
        out += f""".p2align 6
.amdhsa_kernel {nm}
  .amdhsa_next_free_vgpr {acc_off + info['na']}
  .amdhsa_next_free_sgpr 102
  .amdhsa_accum_offset {acc_off}
  .amdhsa_group_segment_fixed_size 0
  .amdhsa_kernarg_size 136
  .amdhsa_user_sgpr_count 2
  .amdhsa_user_sgpr_kernarg_segment_ptr 1
  .amdhsa_system_sgpr_workgroup_id_x 1
.end_amdhsa_kernel
"""
    return out


if __name__ == "__main__":
    opt = {}
    outp = "cdna_kernels/" + NAME + ".s"
    for arg in sys.argv[1:]:
        if arg.startswith("-o="):
            outp = arg[3:]
        else:
            k, v = arg.split("=")
            opt[k] = int(v)
    open(outp, "w").write(generate(opt))
    print("wrote", outp)
```

```python
import sys

NAME = "gated_mix__ssm_conv_s5__dense_activation_mish__prompt"

WS_AT = 0
WS_G = 0xB00000
WS_S = 0xB02000
WS_W2T = 0xC00000
WS_SIZE = 268435456

LOG2E = 0x3FB8AA3B
LN2 = 0x3F317218
INV2PI = 0x3E22F983


class Asm:
    def __init__(self):
        self.lines = []

    def __call__(self, s):
        self.lines.append("    " + s)

    def label(self, s):
        self.lines.append(s + ":")

    def raw(self, s):
        self.lines.append(s)

    def nop(self, n):
        while n > 0:
            k = min(n, 16)
            self(f"s_nop {k-1}")
            n -= k

    def stamp(self, idx):
        if getattr(self, "instr", False):
            self(f"s_memtime s[{84+2*idx}:{85+2*idx}]")

    def stamp_flush(self, srd, base, nst, tmp0, tmp1, swave):
        if not getattr(self, "instr", False):
            return
        self("s_waitcnt lgkmcnt(0)")
        self(f"s_lshl_b32 s82, s2, 2")
        self(f"s_add_u32 s82, s82, s{swave}")
        self(f"s_lshl_b32 s82, s82, 6")
        self(f"s_add_u32 s82, s82, {base:#x}")
        self(f"v_mov_b32 v{tmp1}, 0")
        self("s_mov_b64 exec, 1")
        for i in range(nst):
            self(f"v_mov_b32 v{tmp0}, s{84+2*i}")
            self(f"buffer_store_dword v{tmp0}, v{tmp1}, s[{srd}:{srd+3}], s82 offen offset:{4*i}")
            self("s_nop 1")
        self("s_mov_b64 exec, -1")

    def text(self):
        return "\n".join(self.lines) + "\n"


def interleave(a, main, others, per=1):
    others = list(others)
    n = len(main)
    m = len(others)
    oi = 0
    for i, ins in enumerate(main):
        a(ins)
        want = ((i + 1) * m + n - 1) // n if n else m
        want = min(m, want)
        while oi < want:
            for l in others[oi]:
                a(l)
            oi += 1
    while oi < m:
        for l in others[oi]:
            a(l)
        oi += 1


def srd(a, d, base, nbytes):
    a(f"s_mov_b32 s{d}, s{base}")
    a(f"s_and_b32 s{d+1}, s{base+1}, 0xffff")
    a(f"s_mov_b32 s{d+2}, {nbytes}")
    a(f"s_mov_b32 s{d+3}, 0x00020000")


DPP_SWAP = "quad_perm:[1,0,3,2] row_mask:0xf bank_mask:0xf"


def gen_k1(a, opt):
    MISH_EXACT = opt.get("mish_exact", True)
    BUF = 38912
    OA, OBU, OW1 = 0, 16384, 26624
    L_E = 3 * BUF
    L_T = L_E + 5120
    L_W2 = L_T + 1280
    LDS1 = L_W2 + 8192

    SX, SB, SW1, SWS, SDBG, SW2 = 40, 44, 48, 52, 56, 60
    s_m, s_j, s_w = 64, 65, 66
    s_dA, s_dB, s_dW = 67, 68, 69
    s_kx, s_kw = 70, 71
    s_c = 72
    s_fill = 73
    s_rd = 74
    s_t0, s_t1, s_t2, s_t3 = 76, 77, 78, 79
    s_mask = 80
    s_to = 81

    v_lane = 1
    v_oA = [2, 3, 4, 5]
    v_oB = [6, 7, 8]
    v_oW = [9, 10, 11]
    v_rA = [12, 13]
    v_rB = [14, 15]
    v_rW = [16, 17]
    v_b1 = [18, 19, 20, 21, 22, 23]
    vt = list(range(24, 64))
    ACC = 64
    NV = 152

    def acc(n, s):
        b = ACC + n * 8 + s * 4
        return f"v[{b}:{b+3}]"

    def fa(q, s):
        b = q * 52 + s * 4
        return b

    def fb(q, n):
        b = q * 52 + 8 + n * 4
        return b

    a.label(f"k1_kernel")
    a("s_cmp_ge_u32 s2, 256")
    a("s_cbranch_scc1 k1_end")
    a.stamp(0)
    a("s_load_dwordx8 s[16:23], s[0:1], 0")
    a("s_load_dwordx2 s[24:25], s[0:1], 32")
    a("s_load_dwordx2 s[26:27], s[0:1], 56")
    a("s_load_dwordx8 s[28:35], s[0:1], 80")
    a("s_load_dwordx4 s[36:39], s[0:1], 120")
    a("v_lshrrev_b32 v2, 6, v0")
    a(f"v_and_b32 v{v_lane}, 63, v0")
    a("s_nop 0")
    a(f"v_readfirstlane_b32 s{s_w}, v2")
    MA = opt.get("k1_ma", 8)
    NB = 32 // MA
    XM = 16 // MA
    a(f"s_and_b32 s{s_t0}, s2, 7")
    a(f"s_lshr_b32 s{s_t1}, s2, 3")
    a(f"s_and_b32 s{s_t2}, s{s_t0}, {XM-1}")
    a(f"s_lshr_b32 s{s_t3}, s{s_t0}, {XM.bit_length()-1}")
    a(f"s_mul_i32 s{s_m}, s{s_t2}, {MA}")
    a(f"s_and_b32 s{s_t2}, s{s_t1}, {MA-1}")
    a(f"s_add_u32 s{s_m}, s{s_m}, s{s_t2}")
    a(f"s_mul_i32 s{s_j}, s{s_t3}, {NB}")
    a(f"s_lshr_b32 s{s_t2}, s{s_t1}, {MA.bit_length()-1}")
    a(f"s_add_u32 s{s_j}, s{s_j}, s{s_t2}")
    a("s_waitcnt lgkmcnt(0)")
    if opt.get("touch", 1):
        a(f"s_cmp_eq_u32 s{s_w}, 4")
        a("s_cbranch_scc0 k1_main")
        nx = MA * 128; nb = NB * 40; nw = 64 * (NB * 192 // 128)
        tot = nx + 2 * nb + nw
        per = (tot + 31) // 32
        assert per <= 64
        lw = NB * 192 // 128
        a(f"s_lshr_b32 s{s_t1}, s2, 3")
        a(f"s_mul_i32 s{s_t1}, s{s_t1}, {per}")
        a(f"v_add_u32 v2, s{s_t1}, v{v_lane}")
        a(f"v_cmp_gt_u32 vcc, {per}, v{v_lane}")
        a(f"s_and_b64 exec, exec, vcc")
        a(f"v_cmp_gt_u32 vcc, {tot}, v2")
        a(f"s_and_b64 exec, exec, vcc")
        a(f"s_and_b32 s{s_t0}, s2, 7")
        a(f"s_and_b32 s{s_t1}, s{s_t0}, {XM-1}")
        a(f"s_lshr_b32 s{s_t0}, s{s_t0}, {XM.bit_length()-1}")
        a(f"s_mul_i32 s{s_t1}, s{s_t1}, {nx}")
        a(f"v_add_u32 v3, s{s_t1}, v2")
        a(f"v_mul_u32_u24 v3, 1280, v3")
        a(f"v_mov_b32 v4, s16")
        a(f"v_mov_b32 v5, s17")
        a(f"v_mov_b32 v6, 128")
        a(f"s_mul_i32 s{s_t1}, s{s_t0}, {nb}")
        a(f"v_subrev_u32 v7, {nx}, v2")
        a(f"v_add_u32 v8, s{s_t1}, v7")
        a(f"v_mul_u32_u24 v8, 1280, v8")
        a(f"v_cmp_le_u32 vcc, {nx}, v2")
        a("s_nop 1")
        a(f"v_cndmask_b32 v3, v3, v8, vcc")
        a(f"v_mov_b32 v9, s22")
        a(f"v_cndmask_b32 v4, v4, v9, vcc")
        a(f"v_mov_b32 v9, s23")
        a(f"v_cndmask_b32 v5, v5, v9, vcc")
        a(f"v_subrev_u32 v8, {nb*1280}, v8")
        a(f"v_cmp_le_u32 vcc, {nx+nb}, v2")
        a("s_nop 1")
        a(f"v_cndmask_b32 v3, v3, v8, vcc")
        a(f"v_mov_b32 v9, s24")
        a(f"v_cndmask_b32 v4, v4, v9, vcc")
        a(f"v_mov_b32 v9, s25")
        a(f"v_cndmask_b32 v5, v5, v9, vcc")
        a(f"v_subrev_u32 v7, {nx+2*nb}, v2")
        mg = (1 << 16) // lw + 1
        a(f"v_mul_u32_u24 v8, {mg}, v7")
        a(f"v_lshrrev_b32 v8, 16, v8")
        a(f"v_mul_u32_u24 v9, {lw}, v8")
        a(f"v_sub_u32 v9, v7, v9")
        a(f"v_mul_u32_u24 v8, 3072, v8")
        a(f"v_lshl_add_u32 v8, v9, 7, v8")
        a(f"s_mul_i32 s{s_t1}, s{s_t0}, {NB*192}")
        a(f"v_add_u32 v8, s{s_t1}, v8")
        a(f"v_cmp_le_u32 vcc, {nx+2*nb}, v2")
        a("s_nop 1")
        a(f"v_cndmask_b32 v3, v3, v8, vcc")
        a(f"v_mov_b32 v9, s28")
        a(f"v_cndmask_b32 v4, v4, v9, vcc")
        a(f"v_mov_b32 v9, s29")
        a(f"v_cndmask_b32 v5, v5, v9, vcc")
        a(f"v_mov_b32 v9, {64*3072}")
        a(f"v_cndmask_b32 v6, v6, v9, vcc")
        a(f"v_add_co_u32 v4, vcc, v4, v3")
        a("s_nop 1")
        a(f"v_addc_co_u32 v5, vcc, 0, v5, vcc")
        for q in range(10):
            a(f"global_load_dword v{10+q}, v[4:5], off")
            if q < 9:
                a(f"v_add_co_u32 v4, vcc, v4, v6")
                a("s_nop 1")
                a(f"v_addc_co_u32 v5, vcc, 0, v5, vcc")
        a("s_endpgm")
        a.label("k1_main")
    srd(a, SX, 16, 2621440)
    a(f"s_cmp_ge_u32 s{s_w}, 2")
    a(f"s_cselect_b32 s{s_t0}, s24, s22")
    a(f"s_cselect_b32 s{s_t1}, s25, s23")
    srd(a, SB, s_t0, 819200)
    srd(a, SW1, 28, 1966080)
    srd(a, SWS, 38, WS_SIZE)
    srd(a, SDBG, 36, 256)
    srd(a, SW2, 32, 1966080)

    L = f"v{v_lane}"
    t0, t1, t2, t3, t4, t5 = [f"v{x}" for x in vt[:6]]
    a(f"s_lshl_b32 s{s_t0}, s{s_m}, 7")
    a(f"s_lshl_b32 s{s_t1}, s{s_w}, 5")
    a(f"s_add_u32 s{s_t0}, s{s_t0}, s{s_t1}")
    a(f"v_lshrrev_b32 {t0}, 3, {L}")
    a(f"v_add_u32 {t0}, s{s_t0}, {t0}")
    a(f"v_mul_u32_u24 {t0}, 1280, {t0}")
    a(f"v_bfe_u32 {t1}, {L}, 4, 1")
    a(f"v_and_b32 {t2}, 7, {L}")
    a(f"v_xor_b32 {t1}, {t1}, {t2}")
    for i in range(4):
        a(f"v_xor_b32 {t2}, {i<<1}, {t1}")
        a(f"v_lshlrev_b32 {t2}, 4, {t2}")
        a(f"v_add_u32 {t2}, {t0}, {t2}")
        a(f"v_add_u32 v{v_oA[i]}, {i*8*1280}, {t2}")
    a(f"s_mul_i32 s{s_t0}, s{s_w}, 20")
    a(f"s_lshr_b32 s{s_t1}, s{s_w}, 1")
    a(f"s_mul_i32 s{s_t2}, s{s_t1}, 40")
    a(f"s_mul_i32 s{s_t3}, s{s_j}, 40")
    a(f"s_sub_u32 s{s_t3}, s{s_t3}, s{s_t2}")
    for i in range(3):
        a(f"v_lshrrev_b32 {t0}, 3, {L}")
        a(f"v_add_u32 {t0}, s{s_t0}, {t0}")
        if i:
            a(f"v_add_u32 {t0}, {8*i}, {t0}")
        a(f"v_and_b32 {t1}, 6, {t0}")
        a(f"v_or_b32 {t1}, s{s_t1}, {t1}")
        a(f"v_and_b32 {t2}, 7, {L}")
        a(f"v_xor_b32 {t1}, {t1}, {t2}")
        a(f"v_lshlrev_b32 {t1}, 4, {t1}")
        a(f"v_add_u32 {t0}, s{s_t3}, {t0}")
        a(f"v_mul_u32_u24 {t0}, 1280, {t0}")
        a(f"v_add_u32 v{v_oB[i]}, {t0}, {t1}")
    a(f"s_lshl_b32 s{s_t0}, s{s_w}, 4")
    a(f"s_mul_i32 s{s_t1}, s{s_j}, 192")
    for i in range(3):
        a(f"v_add_u32 {t0}, {i*64}, {L}")
        a(f"v_mul_u32_u24 {t1}, 0x5556, {t0}")
        a(f"v_lshrrev_b32 {t1}, 18, {t1}")
        a(f"v_mul_u32_u24 {t2}, 12, {t1}")
        a(f"v_sub_u32 {t2}, {t0}, {t2}")
        a(f"v_lshrrev_b32 {t3}, 1, {t2}")
        a(f"v_bfe_u32 {t4}, {t1}, 3, 1")
        a(f"v_sub_u32 {t3}, {t3}, {t4}")
        a(f"v_add_u32 {t4}, 6, {t3}")
        a(f"v_cmp_gt_i32 vcc, 0, {t3}")
        a("s_nop 1")
        a(f"v_cndmask_b32 {t3}, {t3}, {t4}, vcc")
        a(f"v_and_b32 {t2}, 1, {t2}")
        a(f"v_lshl_add_u32 {t3}, {t3}, 1, {t2}")
        a(f"v_lshlrev_b32 {t3}, 4, {t3}")
        a(f"v_add_u32 {t1}, s{s_t0}, {t1}")
        a(f"v_mul_u32_u24 {t1}, 3072, {t1}")
        a(f"v_add_u32 {t1}, s{s_t1}, {t1}")
        a(f"v_add_u32 v{v_oW[i]}, {t1}, {t3}")

    a(f"s_mul_i32 s{s_t0}, s{s_j}, 96")
    a(f"v_and_b32 {t0}, 15, {L}")
    a(f"v_add_u32 {t0}, s{s_t0}, {t0}")
    a(f"v_lshlrev_b32 {t0}, 1, {t0}")
    for jt in range(6):
        a(f"global_load_ushort v{v_b1[jt]}, {t0}, s[30:31] offset:{32*jt}")
    pc = vt[8:11]
    gx = list(range(ACC, ACC + 20))
    gw = list(range(ACC + 20, ACC + 40))
    a(f"s_cmp_eq_u32 s{s_w}, 0")
    a("s_cbranch_scc0 k1_p_notw0")
    a(f"s_mul_i32 s{s_t0}, s{s_j}, 40")
    a(f"v_min_u32 {t0}, 39, {L}")
    a(f"v_add_u32 {t0}, s{s_t0}, {t0}")
    a(f"v_lshlrev_b32 {t0}, 1, {t0}")
    a(f"global_load_ushort v{pc[0]}, {t0}, s[18:19]")
    a(f"global_load_ushort v{pc[1]}, {t0}, s[20:21]")
    a(f"global_load_ushort v{pc[2]}, {t0}, s[26:27]")
    a.label("k1_p_notw0")
    a(f"s_cmp_ge_u32 s{s_w}, 2")
    a("s_cbranch_scc0 k1_p_notgate")
    a(f"v_subrev_u32 {t0}, 128, v0")
    a(f"v_lshrrev_b32 {t1}, 4, {t0}")
    a(f"s_lshl_b32 s{s_t0}, s{s_m}, 7")
    a(f"s_lshl_b32 s{s_t1}, s{s_j}, 3")
    a(f"s_add_u32 s{s_t0}, s{s_t0}, s{s_t1}")
    a(f"v_add_u32 {t1}, s{s_t0}, {t1}")
    a(f"v_mul_u32_u24 {t1}, 1280, {t1}")
    a(f"v_and_b32 {t0}, 15, {t0}")
    a(f"v_lshlrev_b32 {t0}, 4, {t0}")
    a(f"v_add_u32 {t1}, {t1}, {t0}")
    for i in range(5):
        a(f"global_load_dwordx4 v[{gx[4*i]}:{gx[4*i+3]}], {t1}, s[16:17] offset:{256*i}")
        a(f"global_load_dwordx4 v[{gw[4*i]}:{gw[4*i+3]}], {t0}, s[34:35] offset:{256*i}")
    a.label("k1_p_notgate")

    a(f"s_lshl_b32 s{s_dA}, s{s_w}, 12")
    a(f"s_mul_i32 s{s_dB}, s{s_w}, 2560")
    a(f"s_add_u32 s{s_dB}, s{s_dB}, {OBU}")
    a(f"s_mul_i32 s{s_dW}, s{s_w}, 3072")
    a(f"s_add_u32 s{s_dW}, s{s_dW}, {OW1}")
    a(f"s_mov_b32 s{s_kx}, 0")
    a(f"s_mov_b32 s{s_kw}, 0")
    a(f"s_mov_b32 s{s_fill}, 0")

    def dma_groups():
        g = []
        for i in range(4):
            g.append([f"s_add_u32 s{s_t0}, s{s_dA}, s{s_fill}",
                      f"s_add_u32 m0, s{s_t0}, {i*1024}",
                      "s_nop 0",
                      f"buffer_load_dwordx4 v{v_oA[i]}, s[{SX}:{SX+3}], s{s_kx} offen lds"])
        for i in range(3):
            pre = [f"s_add_u32 s{s_t0}, s{s_dB}, s{s_fill}",
                   f"s_add_u32 m0, s{s_t0}, {i*1024}"]
            if i == 2:
                g.append(pre + ["s_mov_b64 exec, 0xffffffff",
                                f"buffer_load_dwordx4 v{v_oB[i]}, s[{SB}:{SB+3}], s{s_kx} offen lds",
                                "s_mov_b64 exec, -1"])
            else:
                g.append(pre + ["s_nop 0",
                                f"buffer_load_dwordx4 v{v_oB[i]}, s[{SB}:{SB+3}], s{s_kx} offen lds"])
        for i in range(3):
            g.append([f"s_add_u32 s{s_t0}, s{s_dW}, s{s_fill}",
                      f"s_add_u32 m0, s{s_t0}, {i*1024}",
                      "s_nop 0",
                      f"buffer_load_dwordx4 v{v_oW[i]}, s[{SW1}:{SW1+3}], s{s_kw} offen lds"])
        g.append([f"s_add_u32 s{s_kx}, s{s_kx}, 128",
                  f"s_add_u32 s{s_kw}, s{s_kw}, {64*3072}",
                  f"s_add_u32 s{s_fill}, s{s_fill}, {BUF}",
                  f"s_cmp_ge_u32 s{s_fill}, {3*BUF}",
                  f"s_cselect_b32 s{s_fill}, 0, s{s_fill}"])
        return g

    for c in range(3):
        for grp in dma_groups():
            for l in grp:
                a(l)
    a("s_cmp_ge_u32 s2, 240")
    a("s_cbranch_scc1 k1_now2a")
    a(f"s_mul_i32 s{s_t0}, s2, 0x199a")
    a(f"s_lshr_b32 s{s_t0}, s{s_t0}, 16")
    a(f"s_mul_i32 s{s_t1}, s{s_t0}, 10")
    a(f"s_sub_u32 s{s_t1}, s2, s{s_t1}")
    a(f"s_lshl_b32 s{s_t0}, s{s_t0}, 6")
    a(f"s_lshl_b32 s{s_t2}, s{s_w}, 4")
    a(f"s_add_u32 s{s_t0}, s{s_t0}, s{s_t2}")
    a(f"s_mul_i32 s{s_t0}, s{s_t0}, 1280")
    a(f"s_lshl_b32 s{s_t1}, s{s_t1}, 7")
    a(f"s_add_u32 s{s_t0}, s{s_t0}, s{s_t1}")
    a(f"v_lshrrev_b32 {t0}, 3, {L}")
    a(f"v_mul_u32_u24 {t0}, 1280, {t0}")
    a(f"v_and_b32 {t1}, 7, {L}")
    a(f"v_lshl_add_u32 {t0}, {t1}, 4, {t0}")
    a(f"s_lshl_b32 s{s_t2}, s{s_w}, 11")
    a(f"s_add_u32 m0, s{s_t2}, {L_W2}")
    a("s_nop 0")
    a(f"buffer_load_dwordx4 {t0}, s[{SW2}:{SW2+3}], s{s_t0} offen lds")
    a(f"s_add_u32 m0, s{s_t2}, {L_W2+1024}")
    a(f"s_add_u32 s{s_t0}, s{s_t0}, {8*1280}")
    a(f"buffer_load_dwordx4 {t0}, s[{SW2}:{SW2+3}], s{s_t0} offen lds")
    a("s_branch k1_now2b")
    a.label("k1_now2a")
    a.label("k1_now2b")

    a(f"v_and_b32 {t0}, 15, {L}")
    a(f"v_lshrrev_b32 {t1}, 4, {L}")
    a(f"v_lshrrev_b32 {t2}, 2, {t0}")
    a(f"v_and_b32 {t3}, 3, {t0}")
    a(f"v_lshl_add_u32 {t3}, {t2}, 3, {t3}")
    a(f"s_lshl_b32 s{s_t0}, s{s_w}, 5")
    a(f"v_add_u32 {t3}, s{s_t0}, {t3}")
    a(f"v_lshlrev_b32 {t3}, 7, {t3}")
    a(f"v_bfe_u32 {t4}, {t0}, 1, 1")
    a(f"v_lshl_add_u32 {t4}, {t2}, 1, {t4}")
    a(f"v_xor_b32 {t4}, {t4}, {t1}")
    a(f"v_lshl_add_u32 v{v_rA[0]}, {t4}, 4, {t3}")
    a(f"v_xor_b32 v{v_rA[1]}, 64, v{v_rA[0]}")
    a(f"v_and_b32 {t2}, 1, {t0}")
    a(f"v_lshrrev_b32 {t3}, 1, {t0}")
    a(f"v_mul_u32_u24 {t4}, 40, {t2}")
    a(f"v_add_u32 {t4}, {t4}, {t3}")
    a(f"v_lshlrev_b32 {t4}, 7, {t4}")
    a(f"v_and_b32 {t3}, 6, {t3}")
    a(f"v_or_b32 {t3}, {t3}, {t2}")
    a(f"v_xor_b32 {t3}, {t3}, {t1}")
    a(f"v_lshl_add_u32 {t4}, {t3}, 4, {t4}")
    a(f"v_add_u32 v{v_rB[0]}, {OBU}, {t4}")
    a(f"v_xor_b32 v{v_rB[1]}, 64, v{v_rB[0]}")
    a(f"v_lshrrev_b32 {t2}, 2, {t0}")
    a(f"v_lshl_add_u32 {t2}, {t1}, 3, {t2}")
    a(f"v_mul_u32_u24 {t2}, 192, {t2}")
    a(f"v_and_b32 {t3}, 3, {t0}")
    a(f"v_lshl_add_u32 {t2}, {t3}, 3, {t2}")
    a(f"v_add_u32 {t2}, {OW1}, {t2}")
    a(f"v_and_b32 {t3}, 1, {t1}")
    a(f"v_lshl_add_u32 v{v_rW[0]}, {t3}, 5, {t2}")
    a(f"v_mul_u32_u24 {t3}, 160, {t3}")
    a(f"v_sub_u32 {t3}, 160, {t3}")
    a(f"v_add_u32 v{v_rW[1]}, {t2}, {t3}")
    a(f"s_mov_b32 s{s_rd}, 0")

    a(f"s_cmp_eq_u32 s{s_w}, 0")
    a("s_cbranch_scc0 k1_c_notw0")
    a("s_waitcnt vmcnt(30)")
    a.label("k1_c_w0")
    lre, lim, ldt = [f"v{x}" for x in pc]
    c = [f"v{x}" for x in vt[11:31]]
    a(f"v_lshlrev_b32 {lre}, 16, {lre}")
    a(f"v_lshlrev_b32 {lim}, 16, {lim}")
    a(f"v_lshlrev_b32 {ldt}, 16, {ldt}")
    a(f"s_mov_b32 s{s_t0}, {LOG2E:#x}")
    a(f"s_mov_b32 s{s_t1}, {INV2PI:#x}")
    a(f"v_mul_f32 {ldt}, s{s_t0}, {ldt}")
    a(f"v_exp_f32 {ldt}, {ldt}")
    a("s_nop 0")
    a(f"v_cvt_pk_bf16_f32 {ldt}, {ldt}, {ldt}")
    a(f"v_lshlrev_b32 {ldt}, 16, {ldt}")
    a(f"v_mul_f32 {c[0]}, {ldt}, {lre}")
    a(f"v_mul_f32 {c[1]}, {ldt}, {lim}")
    a(f"v_mul_f32 {c[0]}, s{s_t0}, {c[0]}")
    a(f"v_exp_f32 {c[0]}, {c[0]}")
    a(f"v_mul_f32 {c[1]}, s{s_t1}, {c[1]}")
    a(f"v_fract_f32 {c[1]}, {c[1]}")
    a(f"v_cos_f32 {c[2]}, {c[1]}")
    a(f"v_sin_f32 {c[3]}, {c[1]}")
    a("s_nop 0")
    a(f"v_mul_f32 {c[4]}, {c[0]}, {c[2]}")
    a(f"v_mul_f32 {c[5]}, {c[0]}, {c[3]}")
    a(f"v_mul_f32 {c[12]}, {lre}, {lre}")
    a(f"v_fmac_f32 {c[12]}, {lim}, {lim}")
    a(f"v_rcp_f32 {c[13]}, {c[12]}")
    a("s_nop 0")
    a(f"v_fma_f32 {c[14]}, -{c[12]}, {c[13]}, 1.0")
    a(f"v_fmac_f32 {c[13]}, {c[14]}, {c[13]}")
    a(f"v_add_f32 {c[14]}, -1.0, {c[4]}")
    a(f"v_mul_f32 {c[6]}, {c[14]}, {lre}")
    a(f"v_fmac_f32 {c[6]}, {c[5]}, {lim}")
    a(f"v_mul_f32 {c[6]}, {c[6]}, {c[13]}")
    a(f"v_mul_f32 {c[7]}, {c[5]}, {lre}")
    a(f"v_fma_f32 {c[7]}, -{c[14]}, {lim}, {c[7]}")
    a(f"v_mul_f32 {c[7]}, {c[7]}, {c[13]}")

    def csq(dr, di, sr, si):
        a(f"v_mul_f32 {c[15]}, {si}, {si}")
        a(f"v_fma_f32 {dr if dr != sr else c[16]}, {sr}, {sr}, -{c[15]}")
        a(f"v_mul_f32 {c[15]}, {sr}, {si}")
        a(f"v_add_f32 {di}, {c[15]}, {c[15]}")
        if dr == sr:
            a(f"v_mov_b32 {dr}, {c[16]}")
    csq(c[8], c[9], c[4], c[5])
    csq(c[8], c[9], c[8], c[9])
    csq(c[8], c[9], c[8], c[9])
    csq(c[10], c[11], c[8], c[9])
    csq(c[10], c[11], c[10], c[11])
    csq(c[10], c[11], c[10], c[11])
    csq(c[10], c[11], c[10], c[11])
    a(f"v_lshlrev_b32 {c[15]}, 5, {L}")
    a(f"v_add_u32 {c[15]}, {L_T}, {c[15]}")
    a(f"v_cmp_gt_u32 vcc, 40, {L}")
    a(f"s_and_saveexec_b64 s[{s_t2}:{s_t2+1}], vcc")
    b4 = vt[11 + 4]
    assert b4 % 2 == 1 or True
    a(f"ds_write_b64 {c[15]}, v[{b4}:{b4+1}]" if b4 % 2 == 0 else "")
    if b4 % 2 == 0:
        a(f"ds_write_b64 {c[15]}, v[{b4+2}:{b4+3}] offset:8")
        a(f"ds_write_b64 {c[15]}, v[{b4+4}:{b4+5}] offset:16")
        a(f"ds_write_b64 {c[15]}, v[{b4+6}:{b4+7}] offset:24")
    else:
        for q in range(8):
            a(f"ds_write_b32 {c[15]}, v{b4+q} offset:{4*q}")
    a(f"s_mov_b64 exec, s[{s_t2}:{s_t2+1}]")
    a.label("k1_c_notw0")

    a(f"s_cmp_ge_u32 s{s_w}, 2")
    a("s_cbranch_scc0 k1_g_skip")
    a("s_waitcnt vmcnt(30)")
    accg = f"v{vt[11]}"
    u = [f"v{x}" for x in vt[12:20]]
    a(f"v_mov_b32 {accg}, 0")
    for i in range(20):
        xr, wr = f"v{gx[i]}", f"v{gw[i]}"
        a(f"v_lshlrev_b32 {u[0]}, 16, {xr}")
        a(f"v_and_b32 {u[1]}, 0xffff0000, {xr}")
        a(f"v_lshlrev_b32 {u[2]}, 16, {wr}")
        a(f"v_and_b32 {u[3]}, 0xffff0000, {wr}")
        a(f"v_mul_f32 {u[0]}, {u[0]}, {u[2]}")
        a(f"v_mul_f32 {u[1]}, {u[1]}, {u[3]}")
        a(f"v_cvt_pk_bf16_f32 {u[0]}, {u[0]}, {u[1]}")
        a(f"v_lshlrev_b32 {u[1]}, 16, {u[0]}")
        a(f"v_and_b32 {u[0]}, 0xffff0000, {u[0]}")
        a(f"v_add_f32 {accg}, {accg}, {u[1]}")
        a(f"v_add_f32 {accg}, {accg}, {u[0]}")
    for sh in (8, 4, 2, 1):
        a("s_nop 1")
        a(f"v_add_f32_dpp {accg}, {accg}, {accg} row_ror:{sh} row_mask:0xf bank_mask:0xf")
    a("s_nop 0")
    a(f"v_cvt_pk_bf16_f32 {accg}, {accg}, {accg}")
    a(f"v_lshlrev_b32 {accg}, 16, {accg}")
    a(f"v_mul_f32 {accg}, 0xbfb8aa3b, {accg}")
    a(f"v_exp_f32 {accg}, {accg}")
    a("s_nop 0")
    a(f"v_add_f32 {accg}, 1.0, {accg}")
    a(f"v_rcp_f32 {accg}, {accg}")
    a("s_nop 0")
    a(f"v_cvt_pk_bf16_f32 {accg}, {accg}, {accg}")
    a(f"v_lshlrev_b32 {accg}, 16, {accg}")
    a(f"v_subrev_u32 {u[0]}, 128, v0")
    a(f"v_lshrrev_b32 {u[0]}, 4, {u[0]}")
    a(f"s_lshl_b32 s{s_t0}, s{s_m}, 7")
    a(f"s_lshl_b32 s{s_t1}, s{s_j}, 3")
    a(f"s_add_u32 s{s_t0}, s{s_t0}, s{s_t1}")
    a(f"v_add_u32 {u[0]}, s{s_t0}, {u[0]}")
    a(f"v_lshlrev_b32 {u[0]}, 2, {u[0]}")
    a(f"v_add_u32 {u[0]}, {WS_G:#x}, {u[0]}")
    a(f"v_and_b32 {u[1]}, 15, {L}")
    a(f"v_cmp_eq_u32 vcc, 0, {u[1]}")
    a(f"s_and_saveexec_b64 s[{s_t2}:{s_t2+1}], vcc")
    a(f"buffer_store_dword {accg}, {u[0]}, s[{SWS}:{SWS+3}], 0 offen")
    a(f"s_mov_b64 exec, s[{s_t2}:{s_t2+1}]")
    a.label("k1_g_skip")
    for r in range(88):
        a(f"v_mov_b32 v{ACC+r}, 0")

    def reads(q, ks):
        g = []
        for s in range(2):
            b = fa(q, s)
            g.append([f"ds_read_b128 a[{b}:{b+3}], v{v_rA[ks]} offset:{s*512}"])
        for n in range(5):
            b = fb(q, n)
            g.append([f"ds_read_b128 a[{b}:{b+3}], v{v_rB[ks]} offset:{n*1024}"])
        for n in range(6):
            b = fb(q, 5 + n)
            for h in range(2):
                if n < 5:
                    g.append([f"ds_read_b64_tr_b16 a[{b+2*h}:{b+2*h+1}], v{v_rW[0]} offset:{n*32 + ks*6144 + h*768}"])
                else:
                    g.append([f"ds_read_b64_tr_b16 a[{b+2*h}:{b+2*h+1}], v{v_rW[1]} offset:{ks*6144 + h*768}"])
        return g

    def mfmas(q):
        m = []
        for n in range(11):
            for s in range(2):
                A = fa(q, s)
                B = fb(q, n)
                m.append(f"v_mfma_f32_16x16x32_bf16 {acc(n,s)}, a[{A}:{A+3}], a[{B}:{B+3}], {acc(n,s)}")
        return m

    def addr_update():
        g = [[f"s_add_u32 s{s_t1}, s{s_rd}, {BUF}",
              f"s_cmp_ge_u32 s{s_t1}, {3*BUF}",
              f"s_cselect_b32 s{s_t1}, 0, s{s_t1}",
              f"s_sub_u32 s{s_t2}, s{s_t1}, s{s_rd}",
              f"s_mov_b32 s{s_rd}, s{s_t1}"]]
        for r in v_rA + v_rB + v_rW:
            g.append([f"v_add_u32 v{r}, s{s_t2}, v{r}"])
        return g

    a("s_waitcnt vmcnt(20) lgkmcnt(0)")
    a("s_barrier")
    a.stamp(1)
    for grp in reads(0, 0):
        for l in grp:
            a(l)

    def body(c_static, dma, vm, last):
        a("s_waitcnt lgkmcnt(0)")
        interleave(a, mfmas(0), reads(1, 1))
        if not last:
            a(f"s_waitcnt vmcnt({vm}) lgkmcnt(0)")
            a("s_barrier")
            oth = []
            if dma:
                oth += dma_groups()
            oth += addr_update()
            oth += reads(0, 0)
            interleave(a, mfmas(1), oth)
        else:
            a("s_waitcnt lgkmcnt(0)")
            interleave(a, mfmas(1), [])

    a(f"s_mov_b32 s{s_c}, 0")
    a.label("k1_loop")
    body(None, True, 10, False)
    a(f"s_add_u32 s{s_c}, s{s_c}, 1")
    a(f"s_cmp_lt_u32 s{s_c}, 7")
    a("s_cbranch_scc1 k1_loop")
    body(7, False, 10, False)
    body(8, False, 0, False)
    body(9, False, 0, True)
    a.nop(10)
    a.stamp(2)

    ca = list(range(24, 29)); cb = list(range(29, 34)); ka = list(range(34, 39)); kb = list(range(39, 44))
    vcol, vP, vT, a8, b8, a128, b128, vCaddr, vEaddr, vSt, vTt = range(44, 55)
    T = list(range(55, 64))
    R = list(range(2, 18))
    e0_, e1_, e2_, e3_ = [f"v{x}" for x in T[:4]]
    tq = R[0:16] + [60, 61, 62, 63]
    a(f"v_bfe_u32 {e0_}, {L}, 1, 3")
    a(f"v_lshlrev_b32 {e0_}, 5, {e0_}")
    a(f"v_add_u32 {e0_}, {L_T}, {e0_}")
    for jt in range(5):
        a(f"ds_read_b128 v[{tq[4*jt]}:{tq[4*jt+3]}], {e0_} offset:{jt*256}")
    a(f"v_and_b32 {e1_}, 1, {L}")
    a(f"v_cmp_eq_u32 vcc, 1, {e1_}")
    a("s_waitcnt lgkmcnt(0)")
    for jt in range(5):
        lr, li, kr, ki = [f"v{tq[4*jt+q]}" for q in range(4)]
        a(f"v_mov_b32 v{ca[jt]}, {lr}")
        a(f"v_sub_f32 {e2_}, 0, {li}")
        a(f"v_cndmask_b32 v{cb[jt]}, {e2_}, {li}, vcc")
        a(f"v_add_f32 {e2_}, {kr}, {kr}")
        a(f"v_sub_f32 {e3_}, 0, {e2_}")
        a(f"v_cndmask_b32 v{ka[jt]}, {e2_}, {e3_}, vcc")
        a(f"v_mul_f32 v{kb[jt]}, -2.0, {ki}")
    for i in range(1, 8):
        for jt in range(5):
            a(f"v_fmac_f32 v{ACC+jt*8+i}, v{ca[jt]}, v{ACC+jt*8+i-1}")
        for jt in range(5):
            a(f"v_fmac_f32_dpp v{ACC+jt*8+i}, v{ACC+jt*8+i-1}, v{cb[jt]} {DPP_SWAP}")
    a(f"v_lshrrev_b32 {e0_}, 4, {L}")
    a(f"s_lshl_b32 s{s_t0}, s{s_w}, 2")
    a(f"v_add_u32 {e0_}, s{s_t0}, {e0_}")
    a(f"v_mul_u32_u24 {e0_}, 320, {e0_}")
    a(f"v_and_b32 {e1_}, 15, {L}")
    a(f"v_lshl_add_u32 {e0_}, {e1_}, 2, {e0_}")
    a(f"v_add_u32 v{vEaddr}, {L_E}, {e0_}")
    for jt in range(5):
        a(f"ds_write_b32 v{vEaddr}, v{ACC+jt*8+7} offset:{jt*64}")
    a("s_waitcnt lgkmcnt(0)")
    a("s_barrier")
    vE = R
    a(f"s_cmp_ge_u32 s{s_w}, 2")
    a("s_cbranch_scc1 k1_e3_skip")
    a(f"s_lshl_b32 s{s_t0}, s{s_w}, 6")
    a(f"v_add_u32 v{vcol}, s{s_t0}, {L}")
    a(f"v_min_u32 v{vcol}, 79, v{vcol}")
    a(f"v_lshrrev_b32 {e0_}, 1, v{vcol}")
    a(f"v_lshlrev_b32 {e0_}, 5, {e0_}")
    a(f"v_add_u32 {e0_}, {L_T}, {e0_}")
    a(f"ds_read_b128 v[60:63], {e0_} offset:16")
    a(f"v_lshlrev_b32 v{vCaddr}, 2, v{vcol}")
    a(f"v_add_u32 v{vCaddr}, {L_E}, v{vCaddr}")
    for G in range(16):
        a(f"ds_read_b32 v{vE[G]}, v{vCaddr} offset:{G*320}")
    a(f"v_and_b32 {e1_}, 1, {L}")
    a(f"v_cmp_eq_u32 vcc, 1, {e1_}")
    a("s_waitcnt lgkmcnt(0)")
    a(f"v_mov_b32 v{a8}, v60")
    a(f"v_sub_f32 {e2_}, 0, v61")
    a(f"v_cndmask_b32 v{b8}, {e2_}, v61, vcc")
    a(f"v_mov_b32 v{a128}, v62")
    a(f"v_sub_f32 {e2_}, 0, v63")
    a(f"v_cndmask_b32 v{b128}, {e2_}, v63, vcc")
    a(f"v_mov_b32 v{vP}, v{vE[0]}")
    for G in range(1, 16):
        a(f"v_fma_f32 v{vT}, v{a8}, v{vP}, v{vE[G]}")
        a("s_nop 0")
        a(f"v_fmac_f32_dpp v{vT}, v{vP}, v{b8} {DPP_SWAP}")
        a(f"v_mov_b32 v{vP}, v{vT}")
        a("s_nop 0")
    a(f"s_lshl_b32 s{s_t0}, s{s_m}, 4")
    a(f"s_add_u32 s{s_t0}, s{s_t0}, s{s_j}")
    a(f"s_mul_i32 s{s_t0}, s{s_t0}, 320")
    a(f"s_add_u32 s{s_t0}, s{s_t0}, {WS_S:#x}")
    a(f"v_lshlrev_b32 {e0_}, 2, v{vcol}")
    a(f"s_lshl_b32 s{s_t1}, s{s_w}, 6")
    a(f"v_add_u32 {e1_}, s{s_t1}, {L}")
    a(f"v_cmp_gt_u32 vcc, 80, {e1_}")
    a(f"s_and_saveexec_b64 s[{s_t2}:{s_t2+1}], vcc")
    a(f"buffer_store_dword v{vP}, {e0_}, s[{SWS}:{SWS+3}], s{s_t0} offen sc1")
    a(f"s_mov_b64 exec, s[{s_t2}:{s_t2+1}]")
    a("s_waitcnt vmcnt(0)")
    a(f"s_lshl_b32 s{s_t0}, s{s_m}, 1")
    a(f"s_add_u32 s{s_t0}, s{s_t0}, s{s_w}")
    a(f"s_lshl_b32 s{s_t0}, 1, s{s_t0}")
    a(f"v_mov_b32 {e0_}, s{s_t0}")
    a(f"s_lshl_b32 s{s_t1}, s{s_j}, 2")
    a(f"v_mov_b32 {e1_}, s{s_t1}")
    a("s_mov_b64 exec, 1")
    a(f"buffer_atomic_or {e0_}, {e1_}, s[{SDBG}:{SDBG+3}], 0 offen")
    a("s_mov_b64 exec, -1")
    a.label("k1_e3_skip")
    a.stamp(3)

    a(f"s_mov_b32 s{s_t0}, {LOG2E:#x}")
    a(f"s_mov_b32 s{s_t1}, {LN2:#x}")
    w = [f"v{x}" for x in T]
    for jt in range(6):
        n = 5 + jt
        a(f"v_lshlrev_b32 v{v_b1[jt]}, 16, v{v_b1[jt]}")
        for pr in range(4):
            x0 = f"v{ACC+n*8+2*pr}"
            x1 = f"v{ACC+n*8+2*pr+1}"
            outr = f"v{ACC+n*8+pr}"
            h0, h1, e0, e1, l0, l1, s0_, s1_, p0 = w[0:9]
            bb = f"v{v_b1[jt]}"
            a(f"v_cvt_pk_bf16_f32 {p0}, {x0}, {x1}")
            a(f"v_lshlrev_b32 {h0}, 16, {p0}")
            a(f"v_and_b32 {h1}, 0xffff0000, {p0}")
            a(f"v_add_f32 {h0}, {h0}, {bb}")
            a(f"v_add_f32 {h1}, {h1}, {bb}")
            a(f"v_cvt_pk_bf16_f32 {p0}, {h0}, {h1}")
            a(f"v_lshlrev_b32 {h0}, 16, {p0}")
            a(f"v_and_b32 {h1}, 0xffff0000, {p0}")
            a(f"v_mul_f32 {e0}, s{s_t0}, -abs({h0})")
            a(f"v_mul_f32 {e1}, s{s_t0}, -abs({h1})")
            a(f"v_exp_f32 {e0}, {e0}")
            a(f"v_exp_f32 {e1}, {e1}")
            if MISH_EXACT:
                a("s_nop 0")
                a(f"v_cvt_pk_bf16_f32 {p0}, {e0}, {e1}")
                a(f"v_lshlrev_b32 {e0}, 16, {p0}")
                a(f"v_and_b32 {e1}, 0xffff0000, {p0}")
                a(f"v_add_f32 {l0}, 1.0, {e0}")
                a(f"v_add_f32 {l1}, 1.0, {e1}")
                a(f"v_log_f32 {l0}, {l0}")
                a(f"v_log_f32 {l1}, {l1}")
                a(f"v_mov_b32 {s0_}, 0x3eaaaaab")
                a(f"v_fma_f32 {s1_}, {e1}, {s0_}, -0.5")
                a(f"v_fma_f32 {s0_}, {e0}, {s0_}, -0.5")
                a(f"v_fma_f32 {s0_}, {e0}, {s0_}, 1.0")
                a(f"v_fma_f32 {s1_}, {e1}, {s1_}, 1.0")
                a(f"v_mul_f32 {s0_}, {e0}, {s0_}")
                a(f"v_mul_f32 {s1_}, {e1}, {s1_}")
                a(f"v_mul_f32 {l0}, s{s_t1}, {l0}")
                a(f"v_mul_f32 {l1}, s{s_t1}, {l1}")
                a(f"v_cmp_gt_f32 vcc, 0x3c000000, {e0}")
                a("s_nop 1")
                a(f"v_cndmask_b32 {l0}, {l0}, {s0_}, vcc")
                a(f"v_cmp_gt_f32 vcc, 0x3c000000, {e1}")
                a("s_nop 1")
                a(f"v_cndmask_b32 {l1}, {l1}, {s1_}, vcc")
                a(f"v_cvt_pk_bf16_f32 {p0}, {l0}, {l1}")
                a(f"v_lshlrev_b32 {l0}, 16, {p0}")
                a(f"v_and_b32 {l1}, 0xffff0000, {p0}")
                a(f"v_max_f32 {s0_}, 0, {h0}")
                a(f"v_max_f32 {s1_}, 0, {h1}")
                a(f"v_add_f32 {l0}, {l0}, {s0_}")
                a(f"v_add_f32 {l1}, {l1}, {s1_}")
                a(f"v_cvt_pk_bf16_f32 {p0}, {l0}, {l1}")
                a(f"v_lshlrev_b32 {l0}, 16, {p0}")
                a(f"v_and_b32 {l1}, 0xffff0000, {p0}")
                a(f"v_mul_f32 {e0}, 0x4038aa3b, {l0}")
                a(f"v_mul_f32 {e1}, 0x4038aa3b, {l1}")
                a(f"v_exp_f32 {e0}, {e0}")
                a(f"v_exp_f32 {e1}, {e1}")
                a(f"v_mul_f32 {s0_}, {l0}, {l0}")
                a(f"v_mul_f32 {s1_}, {l1}, {l1}")
                a(f"v_add_f32 {e0}, 1.0, {e0}")
                a(f"v_add_f32 {e1}, 1.0, {e1}")
                a(f"v_rcp_f32 {e0}, {e0}")
                a(f"v_rcp_f32 {e1}, {e1}")
                a(f"v_mul_f32 {s0_}, 0xbeaaaaab, {s0_}")
                a(f"v_mul_f32 {s1_}, 0xbeaaaaab, {s1_}")
                a(f"v_fma_f32 {s0_}, {s0_}, {l0}, {l0}")
                a(f"v_fma_f32 {s1_}, {s1_}, {l1}, {l1}")
                a(f"v_fma_f32 {e0}, {e0}, -2.0, 1.0")
                a(f"v_fma_f32 {e1}, {e1}, -2.0, 1.0")
                a(f"v_cmp_gt_f32 vcc, 0x3d000000, {l0}")
                a("s_nop 1")
                a(f"v_cndmask_b32 {e0}, {e0}, {s0_}, vcc")
                a(f"v_cmp_gt_f32 vcc, 0x3d000000, {l1}")
                a("s_nop 1")
                a(f"v_cndmask_b32 {e1}, {e1}, {s1_}, vcc")
                a(f"v_cvt_pk_bf16_f32 {p0}, {e0}, {e1}")
                a(f"v_lshlrev_b32 {e0}, 16, {p0}")
                a(f"v_and_b32 {e1}, 0xffff0000, {p0}")
                a(f"v_mul_f32 {e0}, {h0}, {e0}")
                a(f"v_mul_f32 {e1}, {h1}, {e1}")
                a(f"v_cvt_pk_bf16_f32 {outr}, {e0}, {e1}")
            else:
                a(f"v_cmp_le_f32 vcc, 0, {h0}")
                a(f"v_cmp_le_f32 s[{s_t2}:{s_t2+1}], 0, {h1}")
                a(f"v_mul_f32 {l0}, {e0}, {e0}")
                a(f"v_mul_f32 {l1}, {e1}, {e1}")
                a(f"v_cndmask_b32 {s0_}, {l0}, 1.0, vcc")
                a(f"v_cndmask_b32 {s1_}, {l1}, 1.0, s[{s_t2}:{s_t2+1}]")
                a(f"v_cndmask_b32 {l0}, 1.0, {l0}, vcc")
                a(f"v_cndmask_b32 {l1}, 1.0, {l1}, s[{s_t2}:{s_t2+1}]")
                a(f"v_fma_f32 {s0_}, {e0}, 2.0, {s0_}")
                a(f"v_fma_f32 {s1_}, {e1}, 2.0, {s1_}")
                a(f"v_fma_f32 {l0}, {l0}, 2.0, {s0_}")
                a(f"v_fma_f32 {l1}, {l1}, 2.0, {s1_}")
                a(f"v_rcp_f32 {l0}, {l0}")
                a(f"v_rcp_f32 {l1}, {l1}")
                a(f"v_mul_f32 {s0_}, {s0_}, {h0}")
                a(f"v_mul_f32 {s1_}, {s1_}, {h1}")
                a(f"v_mul_f32 {e0}, {s0_}, {l0}")
                a(f"v_mul_f32 {e1}, {s1_}, {l1}")
                a(f"v_cvt_pk_bf16_f32 {outr}, {e0}, {e1}")
    a.stamp(4)

    def act_stores():
        a(f"s_mul_i32 s{s_t0}, s{s_j}, 96")
        a(f"s_add_u32 s{s_t0}, s{s_t0}, 1280")
        a(f"v_and_b32 {e0_}, 15, {L}")
        a(f"v_add_u32 {e0_}, s{s_t0}, {e0_}")
        a(f"v_lshlrev_b32 {e0_}, 12, {e0_}")
        a(f"v_add_u32 v{vSt}, {e0_}, v{vTt}")
        a(f"s_mov_b32 s{s_t0}, 0")
        for jt in range(6):
            n = 5 + jt
            a(f"buffer_store_dwordx4 v[{ACC+n*8}:{ACC+n*8+3}], v{vSt}, s[{SWS}:{SWS+3}], s{s_t0} offen")
            if jt < 5:
                a(f"s_add_u32 s{s_t0}, s{s_t0}, {16*4096}")

    def w2_transpose(tag):
        a("s_cmp_ge_u32 s2, 240")
        a(f"s_cbranch_scc1 k1_now2c{tag}")
        a(f"v_and_b32 {e0_}, 15, {L}")
        a(f"v_lshrrev_b32 {e1_}, 4, {L}")
        a(f"v_lshrrev_b32 {e2_}, 2, {e0_}")
        a(f"v_lshl_add_u32 {e2_}, {e1_}, 3, {e2_}")
        a(f"v_lshlrev_b32 {e2_}, 7, {e2_}")
        a(f"v_and_b32 {e3_}, 3, {e0_}")
        a(f"v_lshl_add_u32 {e2_}, {e3_}, 3, {e2_}")
        a(f"s_lshl_b32 s{s_t0}, s{s_w}, 5")
        a(f"s_add_u32 s{s_t0}, s{s_t0}, {L_W2}")
        a(f"v_add_u32 {e2_}, s{s_t0}, {e2_}")
        wq = R[0:8]
        for hf in range(2):
            for h in range(2):
                a(f"ds_read_b64_tr_b16 v[{wq[4*hf+2*h]}:{wq[4*hf+2*h+1]}], {e2_} offset:{hf*4096 + h*512}")
        a(f"s_mul_i32 s{s_t0}, s2, 0x199a")
        a(f"s_lshr_b32 s{s_t0}, s{s_t0}, 16")
        a(f"s_mul_i32 s{s_t1}, s{s_t0}, 10")
        a(f"s_sub_u32 s{s_t1}, s2, s{s_t1}")
        a(f"s_lshl_b32 s{s_t1}, s{s_t1}, 6")
        a(f"s_lshl_b32 s{s_t2}, s{s_w}, 4")
        a(f"s_add_u32 s{s_t1}, s{s_t1}, s{s_t2}")
        a(f"v_add_u32 {e0_}, s{s_t1}, {e0_}")
        a(f"v_mul_u32_u24 {e0_}, 3072, {e0_}")
        a(f"v_lshl_add_u32 {e0_}, {e1_}, 4, {e0_}")
        a(f"s_lshl_b32 s{s_t0}, s{s_t0}, 7")
        a(f"s_add_u32 s{s_t0}, s{s_t0}, {WS_W2T:#x}")
        a("s_waitcnt lgkmcnt(0)")
        a(f"buffer_store_dwordx4 v[{wq[0]}:{wq[3]}], {e0_}, s[{SWS}:{SWS+3}], s{s_t0} offen")
        a(f"buffer_store_dwordx4 v[{wq[4]}:{wq[7]}], {e0_}, s[{SWS}:{SWS+3}], s{s_t0} offen offset:64")
        a("s_nop 1")
        a.label(f"k1_now2c{tag}")

    a(f"s_lshl_b32 s{s_t0}, s{s_m}, 7")
    a(f"s_lshl_b32 s{s_t1}, s{s_w}, 5")
    a(f"s_add_u32 s{s_t0}, s{s_t0}, s{s_t1}")
    a(f"v_lshrrev_b32 {e1_}, 4, {L}")
    a(f"v_lshlrev_b32 {e1_}, 3, {e1_}")
    a(f"v_add_u32 {e1_}, s{s_t0}, {e1_}")
    a(f"v_lshlrev_b32 v{vTt}, 1, {e1_}")

    a(f"s_cmp_ge_u32 s{s_w}, 2")
    a("s_cbranch_scc0 k1_e5_chain")
    act_stores()
    w2_transpose("a")
    a("s_branch k1_e5_skip")
    a.label("k1_e5_chain")
    vS = []
    for jt in range(6):
        vS += [ACC + (5 + jt) * 8 + 4 + q for q in range(4)]
    a(f"v_mov_b32 v{vP}, 0")
    for G in range(15):
        a(f"ds_read_b32 v{vE[G]}, v{vCaddr} offset:{G*320}")
    a(f"s_cmp_eq_u32 s{s_m}, 0")
    a("s_cbranch_scc1 k1_e5_chain2")
    a(f"s_lshl_b32 s{s_t0}, s{s_m}, 1")
    a(f"s_lshl_b32 s{s_t0}, 1, s{s_t0}")
    a(f"s_sub_u32 s{s_t0}, s{s_t0}, 1")
    a(f"s_lshl_b32 s{s_t1}, 0x55555555, s{s_w}")
    a(f"s_and_b32 s{s_mask}, s{s_t0}, s{s_t1}")
    a(f"s_lshl_b32 s{s_t1}, s{s_j}, 2")
    a(f"v_mov_b32 {e1_}, s{s_t1}")
    a(f"s_mov_b32 s{s_to}, 0")
    a.label("k1_poll")
    a(f"buffer_load_dword {e0_}, {e1_}, s[{SDBG}:{SDBG+3}], 0 offen sc1")
    a("s_waitcnt vmcnt(0)")
    a(f"v_readfirstlane_b32 s{s_t0}, {e0_}")
    a("s_nop 3")
    a(f"s_and_b32 s{s_t0}, s{s_t0}, s{s_mask}")
    a(f"s_cmp_eq_u32 s{s_t0}, s{s_mask}")
    a("s_cbranch_scc1 k1_poll_done")
    a(f"s_add_u32 s{s_to}, s{s_to}, 1")
    a(f"s_cmp_lt_u32 s{s_to}, 0x100000")
    a("s_cbranch_scc1 k1_poll")
    a.label("k1_poll_done")
    a.stamp(5)
    a(f"s_mul_i32 s{s_t0}, s{s_j}, 320")
    a(f"s_add_u32 s{s_t0}, s{s_t0}, {WS_S:#x}")
    a(f"v_lshlrev_b32 {e0_}, 2, v{vcol}")
    for mp in range(15):
        a(f"buffer_load_dword v{vS[mp]}, {e0_}, s[{SWS}:{SWS+3}], s{s_t0} offen sc1")
        if mp < 14:
            a(f"s_add_u32 s{s_t0}, s{s_t0}, {16*320}")
    a("s_waitcnt vmcnt(0)")
    for mp in range(15):
        a(f"v_fma_f32 v{vT}, v{a128}, v{vP}, v{vS[mp]}")
        a("s_nop 0")
        a(f"v_fmac_f32_dpp v{vT}, v{vP}, v{b128} {DPP_SWAP}")
        a(f"v_mov_b32 v{vP}, v{vT}")
        if mp < 14:
            a(f"s_cmp_eq_u32 s{s_m}, {mp+1}")
            a("s_cbranch_scc1 k1_e5_chain2")
    a.label("k1_e5_chain2")
    a(f"s_lshl_b32 s{s_t1}, s{s_w}, 6")
    a(f"v_add_u32 {e1_}, s{s_t1}, {L}")
    a(f"v_cmp_gt_u32 vcc, 80, {e1_}")
    a("s_waitcnt lgkmcnt(0)")
    a(f"s_and_saveexec_b64 s[{s_t2}:{s_t2+1}], vcc")
    for G in range(16):
        a(f"ds_write_b32 v{vCaddr}, v{vP} offset:{G*320}")
        if G < 15:
            a(f"v_fma_f32 v{vT}, v{a8}, v{vP}, v{vE[G]}")
            a("s_nop 0")
            a(f"v_fmac_f32_dpp v{vT}, v{vP}, v{b8} {DPP_SWAP}")
            a(f"v_mov_b32 v{vP}, v{vT}")
            a("s_nop 0")
    a(f"s_mov_b64 exec, s[{s_t2}:{s_t2+1}]")
    a.label("k1_e5_skip")
    a("s_waitcnt lgkmcnt(0)")
    a("s_barrier")
    a.stamp(6)
    a(f"s_cmp_ge_u32 s{s_w}, 2")
    a("s_cbranch_scc1 k1_e6")
    act_stores()
    w2_transpose("b")
    a.label("k1_e6")
    cc = R[0:5]
    ct = R[5:10]
    for jt in range(5):
        a(f"ds_read_b32 v{cc[jt]}, v{vEaddr} offset:{jt*64}")
    a("s_waitcnt lgkmcnt(0)")
    for i in range(8):
        for jt in range(5):
            a(f"v_mul_f32 v{ct[jt]}, v{ca[jt]}, v{cc[jt]}")
        for jt in range(5):
            a(f"v_fmac_f32_dpp v{ct[jt]}, v{cc[jt]}, v{cb[jt]} {DPP_SWAP}")
        for jt in range(5):
            a(f"v_add_f32 v{ACC+jt*8+i}, v{ACC+jt*8+i}, v{ct[jt]}")
        cc, ct = ct, cc
    a(f"v_and_b32 {e0_}, 1, {L}")
    a(f"v_mul_u32_u24 {e0_}, 640, {e0_}")
    a(f"v_bfe_u32 {e1_}, {L}, 1, 3")
    a(f"v_add_u32 {e0_}, {e0_}, {e1_}")
    a(f"s_mul_i32 s{s_t0}, s{s_j}, 40")
    a(f"v_add_u32 {e0_}, s{s_t0}, {e0_}")
    a(f"v_lshlrev_b32 {e0_}, 12, {e0_}")
    a(f"v_add_u32 v{vSt}, {e0_}, v{vTt}")
    a(f"s_mov_b32 s{s_t0}, 0")
    o8 = list(range(56, 64))
    for jt in range(5):
        outp = [R[10 + (jt & 1) * 0], 0, 0, 0]
        ob = 12 if (jt & 1) == 0 else 2
        for i in range(8):
            a(f"v_mul_f32 v{o8[i]}, v{ka[jt]}, v{ACC+jt*8+i}")
        for i in range(8):
            a(f"v_fmac_f32_dpp v{o8[i]}, v{ACC+jt*8+i}, v{kb[jt]} {DPP_SWAP}")
        for pr in range(4):
            a(f"v_cvt_pk_bf16_f32 v{ob+pr}, v{o8[2*pr]}, v{o8[2*pr+1]}")
        a(f"buffer_store_dwordx4 v[{ob}:{ob+3}], v{vSt}, s[{SWS}:{SWS+3}], s{s_t0} offen")
        if jt < 4:
            a(f"s_add_u32 s{s_t0}, s{s_t0}, {8*4096}")
    a.stamp(7)
    a.stamp_flush(SWS, 0xF00000, 8, 56, 57, s_w)
    a.label("k1_end")
    a("s_endpgm")
    return dict(lds=LDS1, nv=NV, na=104)


def gen_k2(a, opt):
    BUF = 36864
    OA, OB = 0, 16384
    NBUF = 3
    LDS2 = NBUF * BUF
    SWS, SB, SOUT = 40, 44, 48
    s_mt, s_nt, s_w = 64, 65, 66
    s_dA, s_dB = 67, 68
    s_ka, s_kb = 70, 71
    s_c = 72
    s_fill = 73
    s_rd = 74
    s_t0, s_t1, s_t2, s_t3 = 75, 76, 77, 78
    s_ci = 79

    v_lane = 1
    v_oA = [2, 3, 4, 5]
    v_oB = [6, 7, 8, 9, 10]
    v_oB2 = [11, 12, 13, 14, 15]
    v_rA = 16
    v_rB = [17, 18, 19, 20]
    vt = list(range(24, 48))
    ACC = 48
    ACA = 68
    vxr = list(range(88, 98))
    vds = list(range(98, 108))
    v_g = 108
    NV = 112

    def acc(n):
        return f"v[{ACC+4*n}:{ACC+4*n+3}]"

    def fa(q, s):
        return q * 48 + s * 24

    def fb(q, s, n):
        return q * 48 + s * 24 + 4 + n * 4

    L = f"v{v_lane}"
    t0, t1, t2, t3, t4, t5 = [f"v{x}" for x in vt[:6]]
    a.label("k2_kernel")
    a("s_cmp_ge_u32 s2, 256")
    a("s_cbranch_scc1 k2_end")
    a.stamp(0)
    a("s_load_dwordx2 s[16:17], s[0:1], 0")
    a("s_load_dwordx2 s[18:19], s[0:1], 40")
    a("s_load_dwordx2 s[20:21], s[0:1], 48")
    a("s_load_dwordx2 s[22:23], s[0:1], 64")
    a("s_load_dwordx2 s[24:25], s[0:1], 112")
    a("s_load_dwordx2 s[26:27], s[0:1], 128")
    a("v_lshrrev_b32 v2, 6, v0")
    a(f"v_and_b32 v{v_lane}, 63, v0")
    a("s_nop 0")
    a(f"v_readfirstlane_b32 s{s_w}, v2")
    MA = opt.get("k2_ma", 4)
    NB = 32 // MA
    XM = 32 // MA
    a(f"s_and_b32 s{s_t0}, s2, 7")
    a(f"s_lshr_b32 s{s_t1}, s2, 3")
    a(f"s_and_b32 s{s_t2}, s{s_t0}, {XM-1}")
    a(f"s_lshr_b32 s{s_t3}, s{s_t0}, {XM.bit_length()-1}")
    a(f"s_mul_i32 s{s_mt}, s{s_t2}, {MA}")
    a(f"s_and_b32 s{s_t2}, s{s_t1}, {MA-1}")
    a(f"s_add_u32 s{s_mt}, s{s_mt}, s{s_t2}")
    a(f"s_mul_i32 s{s_nt}, s{s_t3}, {NB}")
    a(f"s_lshr_b32 s{s_t2}, s{s_t1}, {MA.bit_length()-1}")
    a(f"s_add_u32 s{s_nt}, s{s_nt}, s{s_t2}")
    a("s_waitcnt lgkmcnt(0)")
    if opt.get("touch", 1):
        a(f"s_cmp_eq_u32 s{s_w}, 4")
        a("s_cbranch_scc0 k2_main")
        na = 128 * MA; nbl = NB * 80 * 2
        tot = na + nbl
        per = (tot + 31) // 32
        assert per <= 64
        a(f"s_lshr_b32 s{s_t1}, s2, 3")
        a(f"s_mul_i32 s{s_t1}, s{s_t1}, {per}")
        a(f"v_add_u32 v2, s{s_t1}, v{v_lane}")
        a(f"v_cmp_gt_u32 vcc, {per}, v{v_lane}")
        a(f"s_and_b64 exec, exec, vcc")
        a(f"v_cmp_gt_u32 vcc, {tot}, v2")
        a(f"s_and_b64 exec, exec, vcc")
        a(f"s_and_b32 s{s_t0}, s2, 7")
        a(f"s_and_b32 s{s_t1}, s{s_t0}, {XM-1}")
        a(f"s_lshr_b32 s{s_t0}, s{s_t0}, {XM.bit_length()-1}")
        a(f"v_lshrrev_b32 v3, {MA.bit_length()-1}, v2")
        a(f"v_lshlrev_b32 v3, 12, v3")
        a(f"v_and_b32 v7, {MA-1}, v2")
        a(f"s_mul_i32 s{s_t1}, s{s_t1}, {MA}")
        a(f"v_add_u32 v7, s{s_t1}, v7")
        a(f"v_lshl_add_u32 v3, v7, 7, v3")
        a(f"v_subrev_u32 v7, {na}, v2")
        a(f"v_lshrrev_b32 v8, 1, v7")
        a(f"s_mul_i32 s{s_t1}, s{s_t0}, {NB*80}")
        a(f"v_add_u32 v8, s{s_t1}, v8")
        a(f"v_and_b32 v7, 1, v7")
        a(f"v_lshlrev_b32 v7, 7, v7")
        a(f"v_mul_u32_u24 v9, 1280, v8")
        a(f"v_add_u32 v9, v9, v7")
        a(f"v_mul_u32_u24 v10, 3072, v8")
        a(f"v_add_u32 v10, v10, v7")
        a(f"v_add_u32 v10, {WS_W2T:#x}, v10")
        a(f"v_cmp_le_u32 vcc, {na}, v2")
        a(f"s_mov_b64 s[76:77], vcc")
        a("s_nop 1")
        a(f"v_mov_b32 v6, {128*4096}")
        a(f"v_mov_b32 v11, 256")
        a(f"v_cndmask_b32 v6, v6, v11, s[76:77]")
        a(f"v_mov_b32 v13, s27")
        a(f"v_add_co_u32 v12, vcc, s26, v3")
        a("s_nop 1")
        a(f"v_addc_co_u32 v13, vcc, 0, v13, vcc")
        q = 0
        for ph, (sb, off, n) in enumerate(((18, "v9", 5), (20, "v9", 5), (26, "v10", 12))):
            a(f"v_mov_b32 v15, s{sb+1}")
            a(f"v_add_co_u32 v14, vcc, s{sb}, {off}")
            a("s_nop 1")
            a(f"v_addc_co_u32 v15, vcc, 0, v15, vcc")
            a(f"v_cndmask_b32 v12, v12, v14, s[76:77]")
            a(f"v_cndmask_b32 v13, v13, v15, s[76:77]")
            for c in range(n):
                a(f"global_load_dword v{20+q}, v[12:13], off")
                a(f"v_add_co_u32 v12, vcc, v12, v6")
                a("s_nop 1")
                a(f"v_addc_co_u32 v13, vcc, 0, v13, vcc")
                q += 1
        a("s_endpgm")
        a.label("k2_main")
    srd(a, SWS, 26, WS_SIZE)
    srd(a, SB, 18, 819200)
    srd(a, SOUT, 24, 5242880)

    a(f"s_lshl_b32 s{s_t0}, s{s_w}, 5")
    a(f"v_lshrrev_b32 {t0}, 3, {L}")
    a(f"v_add_u32 {t0}, s{s_t0}, {t0}")
    a(f"v_lshlrev_b32 {t0}, 12, {t0}")
    a(f"s_lshl_b32 s{s_t1}, s{s_mt}, 7")
    a(f"v_add_u32 {t0}, s{s_t1}, {t0}")
    a(f"v_bfe_u32 {t1}, {L}, 1, 2")
    a(f"v_bfe_u32 {t2}, {L}, 4, 1")
    a(f"v_xor_b32 {t1}, {t1}, {t2}")
    a(f"v_and_b32 {t2}, 1, {L}")
    for i in range(4):
        a(f"v_xor_b32 {t3}, {(i&1)<<1}, {t1}")
        a(f"v_lshl_add_u32 {t3}, {t3}, 1, {t2}")
        a(f"v_lshl_add_u32 {t3}, {t3}, 4, {t0}")
        a(f"v_add_u32 v{v_oA[i]}, {i*8*4096}, {t3}")
    a(f"s_mul_i32 s{s_t0}, s{s_w}, 20")
    a(f"s_mul_i32 s{s_t1}, s{s_nt}, 80")
    for i in range(5):
        a(f"v_lshrrev_b32 {t0}, 4, {L}")
        a(f"v_add_u32 {t0}, s{s_t0}, {t0}")
        if i:
            a(f"v_add_u32 {t0}, {4*i}, {t0}")
        a(f"v_xor_b32 {t1}, {t0}, {L}")
        a(f"v_and_b32 {t1}, 15, {t1}")
        a(f"v_lshlrev_b32 {t1}, 4, {t1}")
        a(f"v_add_u32 {t0}, s{s_t1}, {t0}")
        a(f"v_mul_u32_u24 {t2}, 1280, {t0}")
        a(f"v_add_u32 v{v_oB[i]}, {t2}, {t1}")
        a(f"v_mul_u32_u24 {t2}, 3072, {t0}")
        a(f"v_add_u32 {t2}, {t2}, {t1}")
        a(f"v_add_u32 v{v_oB2[i]}, {WS_W2T:#x}, {t2}")
    a(f"s_lshl_b32 s{s_dA}, s{s_w}, 12")
    a(f"s_mul_i32 s{s_dB}, s{s_w}, 5120")
    a(f"s_add_u32 s{s_dB}, s{s_dB}, {OB}")
    a(f"s_mov_b32 s{s_ka}, 0")
    a(f"s_mov_b32 s{s_kb}, 0")
    a(f"s_mov_b32 s{s_fill}, 0")
    a(f"s_mov_b32 s{s_ci}, 0")

    uid = [0]

    def dma_groups():
        g = []
        u = uid[0]
        uid[0] += 1
        for i in range(4):
            g.append([f"s_add_u32 s{s_t0}, s{s_dA}, s{s_fill}",
                      f"s_add_u32 m0, s{s_t0}, {i*1024}",
                      "s_nop 0",
                      f"buffer_load_dwordx4 v{v_oA[i]}, s[{SWS}:{SWS+3}], s{s_ka} offen lds"])
        for i in range(5):
            g.append([f"s_add_u32 s{s_t0}, s{s_dB}, s{s_fill}",
                      f"s_add_u32 m0, s{s_t0}, {i*1024}",
                      "s_nop 0",
                      f"buffer_load_dwordx4 v{v_oB[i]}, s[{SB}:{SB+3}], s{s_kb} offen lds"])
        adv = [f"s_add_u32 s{s_ka}, s{s_ka}, {128*4096}",
               f"s_add_u32 s{s_kb}, s{s_kb}, 256",
               f"s_add_u32 s{s_fill}, s{s_fill}, {BUF}",
               f"s_cmp_ge_u32 s{s_fill}, {NBUF*BUF}",
               f"s_cselect_b32 s{s_fill}, 0, s{s_fill}",
               f"s_add_u32 s{s_ci}, s{s_ci}, 1",
               f"s_cmp_eq_u32 s{s_ci}, 5",
               f"s_cbranch_scc0 k2_sw5_{u}",
               f"s_mov_b32 s{SB}, s20",
               f"s_and_b32 s{SB+1}, s21, 0xffff",
               f"s_mov_b32 s{s_kb}, 0",
               f"k2_sw5_{u}:",
               f"s_cmp_eq_u32 s{s_ci}, 10",
               f"s_cbranch_scc0 k2_sw10_{u}",
               f"s_mov_b32 s{SB}, s26",
               f"s_and_b32 s{SB+1}, s27, 0xffff",
               f"s_mov_b32 s{SB+2}, {WS_SIZE}",
               f"s_mov_b32 s{s_kb}, 0"]
        for i in range(5):
            adv.append(f"v_mov_b32 v{v_oB[i]}, v{v_oB2[i]}")
        adv.append(f"k2_sw10_{u}:")
        g.append(adv)
        return g

    a(f"s_lshl_b32 s{s_t0}, s{s_mt}, 6")
    a(f"s_lshl_b32 s{s_t1}, s{s_w}, 4")
    a(f"s_add_u32 s{s_t0}, s{s_t0}, s{s_t1}")
    a(f"v_and_b32 {t0}, 15, {L}")
    a(f"v_add_u32 {t0}, s{s_t0}, {t0}")
    v_t = vt[6]
    v_d = vt[7]
    a(f"v_mov_b32 v{v_t}, {t0}")
    a(f"s_mul_i32 s{s_t1}, s{s_nt}, 80")
    a(f"v_lshrrev_b32 {t1}, 4, {L}")
    a(f"v_lshlrev_b32 {t1}, 2, {t1}")
    a(f"v_add_u32 v{v_d}, s{s_t1}, {t1}")
    a(f"v_mul_u32_u24 {t2}, 1280, {t0}")
    a(f"v_lshl_add_u32 {t2}, v{v_d}, 1, {t2}")
    a(f"v_lshlrev_b32 {t3}, 1, v{v_d}")
    for jt in range(5):
        a(f"global_load_dwordx2 v[{vxr[2*jt]}:{vxr[2*jt+1]}], {t2}, s[16:17] offset:{32*jt}")
        a(f"global_load_dwordx2 v[{vds[2*jt]}:{vds[2*jt+1]}], {t3}, s[22:23] offset:{32*jt}")
    a(f"v_lshlrev_b32 {t4}, 2, {t0}")
    a(f"v_add_u32 {t4}, {WS_G:#x}, {t4}")
    a(f"buffer_load_dword v{v_g}, {t4}, s[{SWS}:{SWS+3}], 0 offen")

    for c in range(NBUF):
        for grp in dma_groups():
            for l in grp:
                if l.endswith(":"):
                    a.raw(l)
                else:
                    a(l)

    a(f"v_and_b32 {t0}, 15, {L}")
    a(f"v_lshrrev_b32 {t1}, 4, {L}")
    a(f"v_lshrrev_b32 {t2}, 2, {t0}")
    a(f"v_lshl_add_u32 {t3}, {t1}, 3, {t2}")
    a(f"v_lshlrev_b32 {t3}, 7, {t3}")
    a(f"v_bfe_u32 {t4}, {t2}, 1, 1")
    a(f"v_and_b32 {t5}, 1, {t1}")
    a(f"v_lshl_add_u32 {t4}, {t5}, 1, {t4}")
    a(f"v_xor_b32 {t4}, s{s_w}, {t4}")
    a(f"v_lshl_add_u32 {t3}, {t4}, 5, {t3}")
    a(f"v_and_b32 {t4}, 3, {t0}")
    a(f"v_lshl_add_u32 v{v_rA}, {t4}, 3, {t3}")
    a(f"v_lshlrev_b32 {t3}, 8, {t0}")
    a(f"v_add_u32 {t3}, {OB}, {t3}")
    for s in range(4):
        a(f"v_add_u32 {t4}, {4*s}, {t1}")
        a(f"v_xor_b32 {t4}, {t4}, {t0}")
        a(f"v_lshl_add_u32 v{v_rB[s]}, {t4}, 4, {t3}")
    a(f"s_mov_b32 s{s_rd}, 0")
    for r in range(20):
        a(f"v_mov_b32 v{ACC+r}, 0")

    def reads(q, half):
        g = []
        for s2 in range(2):
            s = half * 2 + s2
            b = fa(q, s2)
            for h in range(2):
                g.append([f"ds_read_b64_tr_b16 a[{b+2*h}:{b+2*h+1}], v{v_rA} offset:{s*4096 + h*512}"])
            for n in range(5):
                b = fb(q, s2, n)
                g.append([f"ds_read_b128 a[{b}:{b+3}], v{v_rB[s]} offset:{n*4096}"])
        return g

    def mfmas(q):
        m = []
        for s2 in range(2):
            for n in range(5):
                A = fa(q, s2)
                B = fb(q, s2, n)
                m.append(f"v_mfma_f32_16x16x32_bf16 {acc(n)}, a[{B}:{B+3}], a[{A}:{A+3}], {acc(n)}")
        return m

    def addr_update():
        g = [[f"s_add_u32 s{s_t1}, s{s_rd}, {BUF}",
              f"s_cmp_ge_u32 s{s_t1}, {NBUF*BUF}",
              f"s_cselect_b32 s{s_t1}, 0, s{s_t1}",
              f"s_sub_u32 s{s_t2}, s{s_t1}, s{s_rd}",
              f"s_mov_b32 s{s_rd}, s{s_t1}"]]
        for r in [v_rA] + v_rB:
            g.append([f"v_add_u32 v{r}, s{s_t2}, v{r}"])
        return g

    def emit_groups_inter(main, oth):
        n = len(main)
        m = len(oth)
        oi = 0
        for i, ins in enumerate(main):
            a(ins)
            want = min(m, ((i + 1) * m + n - 1) // n)
            while oi < want:
                for l in oth[oi]:
                    if l.endswith(":"):
                        a.raw(l)
                    else:
                        a(l)
                oi += 1

    a(f"s_waitcnt vmcnt({9*(NBUF-1)})")
    a("s_barrier")
    a.stamp(1)
    for grp in reads(0, 0):
        for l in grp:
            a(l)

    def body(dma, vm, last):
        a("s_waitcnt lgkmcnt(0)")
        emit_groups_inter(mfmas(0), reads(1, 1))
        if not last:
            a(f"s_waitcnt vmcnt({vm}) lgkmcnt(0)")
            a("s_barrier")
            oth = []
            if dma:
                oth += dma_groups()
            oth += addr_update()
            oth += reads(0, 0)
            emit_groups_inter(mfmas(1), oth)
        else:
            a("s_waitcnt lgkmcnt(0)")
            emit_groups_inter(mfmas(1), [])

    a(f"s_mov_b32 s{s_c}, 0")
    a.label("k2_loop")
    body(True, 9 * (NBUF - 2), False)
    a(f"s_add_u32 s{s_c}, s{s_c}, 1")
    a(f"s_cmp_eq_u32 s{s_c}, 10")
    a("s_cbranch_scc0 k2_nosw")
    a.nop(10)
    for r in range(20):
        a(f"v_mov_b32 v{ACA+r}, v{ACC+r}")
    for r in range(20):
        a(f"v_mov_b32 v{ACC+r}, 0")
    a("s_nop 1")
    a.label("k2_nosw")
    a(f"s_cmp_lt_u32 s{s_c}, {22-NBUF}")
    a("s_cbranch_scc1 k2_loop")
    for c in range(22 - NBUF, 22):
        rem = 21 - c
        body(False, 9 * max(0, rem - 1), rem == 0)
    a.nop(10)
    a.stamp(2)
    g = f"v{v_g}"
    omg = f"v{vt[8]}"
    a(f"v_sub_f32 {omg}, 1.0, {g}")
    a(f"v_cvt_pk_bf16_f32 {omg}, {omg}, {omg}")
    a(f"v_lshlrev_b32 {omg}, 16, {omg}")
    a(f"v_mul_u32_u24 {t0}, 2560, v{v_t}")
    a(f"v_lshl_add_u32 {t0}, v{v_d}, 2, {t0}")
    u = [f"v{x}" for x in vt[10:22]]
    for jt in range(5):
        for pr in range(2):
            xr = f"v{vxr[2*jt+pr]}"
            dr = f"v{vds[2*jt+pr]}"
            a(f"v_lshlrev_b32 {u[0]}, 16, {xr}")
            a(f"v_and_b32 {u[1]}, 0xffff0000, {xr}")
            a(f"v_lshlrev_b32 {u[2]}, 16, {dr}")
            a(f"v_and_b32 {u[3]}, 0xffff0000, {dr}")
            a(f"v_mul_f32 {u[0]}, {u[0]}, {u[2]}")
            a(f"v_mul_f32 {u[1]}, {u[1]}, {u[3]}")
            a(f"v_cvt_pk_bf16_f32 {u[0]}, {u[0]}, {u[1]}")
            a(f"v_lshlrev_b32 {u[1]}, 16, {u[0]}")
            a(f"v_and_b32 {u[0]}, 0xffff0000, {u[0]}")
            a0 = f"v{ACA+4*jt+2*pr}"
            a1 = f"v{ACA+4*jt+2*pr+1}"
            b0 = f"v{ACC+4*jt+2*pr}"
            b1 = f"v{ACC+4*jt+2*pr+1}"
            a(f"v_add_f32 {a0}, {a0}, {u[1]}")
            a(f"v_add_f32 {a1}, {a1}, {u[0]}")
            a(f"v_cvt_pk_bf16_f32 {u[2]}, {b0}, {b1}")
            a(f"v_lshlrev_b32 {u[3]}, 16, {u[2]}")
            a(f"v_and_b32 {u[2]}, 0xffff0000, {u[2]}")
            a(f"v_mul_f32 {u[3]}, {omg}, {u[3]}")
            a(f"v_mul_f32 {u[2]}, {omg}, {u[2]}")
            a(f"v_cvt_pk_bf16_f32 {u[2]}, {u[3]}, {u[2]}")
            a(f"v_lshlrev_b32 {u[3]}, 16, {u[2]}")
            a(f"v_and_b32 {u[2]}, 0xffff0000, {u[2]}")
            a(f"v_mul_f32 {a0}, {g}, {a0}")
            a(f"v_mul_f32 {a1}, {g}, {a1}")
            a(f"v_add_f32 {a0}, {a0}, {u[3]}")
            a(f"v_add_f32 {a1}, {a1}, {u[2]}")
        a(f"buffer_store_dwordx4 v[{ACA+4*jt}:{ACA+4*jt+3}], {t0}, s[{SOUT}:{SOUT+3}], 0 offen offset:{64*jt}")
    a.stamp(3)
    a.stamp_flush(SWS, 0xF40000, 4, vt[0], vt[1], s_w)
    a.label("k2_end")
    a("s_endpgm")
    return dict(lds=LDS2, nv=NV, na=96)


HEADER = open("cdna_kernels/" + NAME + ".s.ref").read().split("; Override")[0]


def generate(opt):
    a1 = Asm()
    a1.instr = bool(opt.get("instr", 0))
    i1 = gen_k1(a1, opt)
    a2 = Asm()
    a2.instr = bool(opt.get("instr", 0))
    i2 = gen_k2(a2, opt)
    out = HEADER
    BLK = 320 if opt.get("touch", 1) else 256
    out += f"; @launch kernel=k1_kernel grid=(256,1,1) block=({BLK},1,1) lds={i1['lds']}\n"
    out += f"; @launch kernel=k2_kernel grid=(256,1,1) block=({BLK},1,1) lds={i2['lds']}\n"
    out += '.amdgcn_target "amdgcn-amd-amdhsa--gfx950"\n.text\n'
    for nm, aa in (("k1_kernel", a1), ("k2_kernel", a2)):
        out += f".globl {nm}\n.p2align 8\n.type {nm},@function\n"
        out += aa.text()
    out += '.section .rodata,"a"\n'
    for nm, info in (("k1_kernel", i1), ("k2_kernel", i2)):
        acc_off = (info["nv"] + 3) // 4 * 4
        out += f""".p2align 6
.amdhsa_kernel {nm}
  .amdhsa_next_free_vgpr {acc_off + info['na']}
  .amdhsa_next_free_sgpr 102
  .amdhsa_accum_offset {acc_off}
  .amdhsa_group_segment_fixed_size 0
  .amdhsa_kernarg_size 136
  .amdhsa_user_sgpr_count 2
  .amdhsa_user_sgpr_kernarg_segment_ptr 1
  .amdhsa_system_sgpr_workgroup_id_x 1
.end_amdhsa_kernel
"""
    return out


if __name__ == "__main__":
    opt = {}
    outp = "cdna_kernels/" + NAME + ".s"
    for arg in sys.argv[1:]:
        if arg.startswith("-o="):
            outp = arg[3:]
        else:
            k, v = arg.split("=")
            opt[k] = int(v)
    open(outp, "w").write(generate(opt))
    print("wrote", outp)
```

```python
import sys
from gen import Asm, interleave, srd, DPP_SWAP, NAME, WS_AT, WS_G, WS_S, WS_W2T, WS_SIZE, LOG2E, LN2, INV2PI, HEADER


def emit(a, groups):
    for grp in groups:
        for l in grp:
            if l.endswith(":"):
                a.raw(l)
            else:
                a(l)


def mish_pair(a, exact, x0, x1, outr, bb, w, s_l2e, s_ln2, s_pair):
    h0, h1, e0, e1, l0, l1, s0_, s1_, p0 = w[0:9]
    a(f"v_cvt_pk_bf16_f32 {p0}, {x0}, {x1}")
    a(f"v_lshlrev_b32 {h0}, 16, {p0}")
    a(f"v_and_b32 {h1}, 0xffff0000, {p0}")
    a(f"v_add_f32 {h0}, {h0}, {bb}")
    a(f"v_add_f32 {h1}, {h1}, {bb}")
    a(f"v_cvt_pk_bf16_f32 {p0}, {h0}, {h1}")
    a(f"v_lshlrev_b32 {h0}, 16, {p0}")
    a(f"v_and_b32 {h1}, 0xffff0000, {p0}")
    a(f"v_mul_f32 {e0}, s{s_l2e}, -abs({h0})")
    a(f"v_mul_f32 {e1}, s{s_l2e}, -abs({h1})")
    a(f"v_exp_f32 {e0}, {e0}")
    a(f"v_exp_f32 {e1}, {e1}")
    if exact:
        a("s_nop 0")
        a(f"v_cvt_pk_bf16_f32 {p0}, {e0}, {e1}")
        a(f"v_lshlrev_b32 {e0}, 16, {p0}")
        a(f"v_and_b32 {e1}, 0xffff0000, {p0}")
        a(f"v_add_f32 {l0}, 1.0, {e0}")
        a(f"v_add_f32 {l1}, 1.0, {e1}")
        a(f"v_log_f32 {l0}, {l0}")
        a(f"v_log_f32 {l1}, {l1}")
        a(f"v_mov_b32 {s0_}, 0x3eaaaaab")
        a(f"v_fma_f32 {s1_}, {e1}, {s0_}, -0.5")
        a(f"v_fma_f32 {s0_}, {e0}, {s0_}, -0.5")
        a(f"v_fma_f32 {s0_}, {e0}, {s0_}, 1.0")
        a(f"v_fma_f32 {s1_}, {e1}, {s1_}, 1.0")
        a(f"v_mul_f32 {s0_}, {e0}, {s0_}")
        a(f"v_mul_f32 {s1_}, {e1}, {s1_}")
        a(f"v_mul_f32 {l0}, s{s_ln2}, {l0}")
        a(f"v_mul_f32 {l1}, s{s_ln2}, {l1}")
        a(f"v_cmp_gt_f32 vcc, 0x3c000000, {e0}")
        a("s_nop 1")
        a(f"v_cndmask_b32 {l0}, {l0}, {s0_}, vcc")
        a(f"v_cmp_gt_f32 vcc, 0x3c000000, {e1}")
        a("s_nop 1")
        a(f"v_cndmask_b32 {l1}, {l1}, {s1_}, vcc")
        a(f"v_cvt_pk_bf16_f32 {p0}, {l0}, {l1}")
        a(f"v_lshlrev_b32 {l0}, 16, {p0}")
        a(f"v_and_b32 {l1}, 0xffff0000, {p0}")
        a(f"v_max_f32 {s0_}, 0, {h0}")
        a(f"v_max_f32 {s1_}, 0, {h1}")
        a(f"v_add_f32 {l0}, {l0}, {s0_}")
        a(f"v_add_f32 {l1}, {l1}, {s1_}")
        a(f"v_cvt_pk_bf16_f32 {p0}, {l0}, {l1}")
        a(f"v_lshlrev_b32 {l0}, 16, {p0}")
        a(f"v_and_b32 {l1}, 0xffff0000, {p0}")
        a(f"v_mul_f32 {e0}, 0x4038aa3b, {l0}")
        a(f"v_mul_f32 {e1}, 0x4038aa3b, {l1}")
        a(f"v_exp_f32 {e0}, {e0}")
        a(f"v_exp_f32 {e1}, {e1}")
        a(f"v_mul_f32 {s0_}, {l0}, {l0}")
        a(f"v_mul_f32 {s1_}, {l1}, {l1}")
        a(f"v_add_f32 {e0}, 1.0, {e0}")
        a(f"v_add_f32 {e1}, 1.0, {e1}")
        a(f"v_rcp_f32 {e0}, {e0}")
        a(f"v_rcp_f32 {e1}, {e1}")
        a(f"v_mul_f32 {s0_}, 0xbeaaaaab, {s0_}")
        a(f"v_mul_f32 {s1_}, 0xbeaaaaab, {s1_}")
        a(f"v_fma_f32 {s0_}, {s0_}, {l0}, {l0}")
        a(f"v_fma_f32 {s1_}, {s1_}, {l1}, {l1}")
        a(f"v_fma_f32 {e0}, {e0}, -2.0, 1.0")
        a(f"v_fma_f32 {e1}, {e1}, -2.0, 1.0")
        a(f"v_cmp_gt_f32 vcc, 0x3d000000, {l0}")
        a("s_nop 1")
        a(f"v_cndmask_b32 {e0}, {e0}, {s0_}, vcc")
        a(f"v_cmp_gt_f32 vcc, 0x3d000000, {l1}")
        a("s_nop 1")
        a(f"v_cndmask_b32 {e1}, {e1}, {s1_}, vcc")
        a(f"v_cvt_pk_bf16_f32 {p0}, {e0}, {e1}")
        a(f"v_lshlrev_b32 {e0}, 16, {p0}")
        a(f"v_and_b32 {e1}, 0xffff0000, {p0}")
        a(f"v_mul_f32 {e0}, {h0}, {e0}")
        a(f"v_mul_f32 {e1}, {h1}, {e1}")
        a(f"v_cvt_pk_bf16_f32 {outr}, {e0}, {e1}")
    else:
        sp = f"s[{s_pair}:{s_pair+1}]"
        a(f"v_cmp_le_f32 vcc, 0, {h0}")
        a(f"v_cmp_le_f32 {sp}, 0, {h1}")
        a(f"v_mul_f32 {l0}, {e0}, {e0}")
        a(f"v_mul_f32 {l1}, {e1}, {e1}")
        a(f"v_cndmask_b32 {s0_}, {l0}, 1.0, vcc")
        a(f"v_cndmask_b32 {s1_}, {l1}, 1.0, {sp}")
        a(f"v_cndmask_b32 {l0}, 1.0, {l0}, vcc")
        a(f"v_cndmask_b32 {l1}, 1.0, {l1}, {sp}")
        a(f"v_fma_f32 {s0_}, {e0}, 2.0, {s0_}")
        a(f"v_fma_f32 {s1_}, {e1}, 2.0, {s1_}")
        a(f"v_fma_f32 {l0}, {l0}, 2.0, {s0_}")
        a(f"v_fma_f32 {l1}, {l1}, 2.0, {s1_}")
        a(f"v_rcp_f32 {l0}, {l0}")
        a(f"v_rcp_f32 {l1}, {l1}")
        a(f"v_mul_f32 {s0_}, {s0_}, {h0}")
        a(f"v_mul_f32 {s1_}, {s1_}, {h1}")
        a(f"v_mul_f32 {e0}, {s0_}, {l0}")
        a(f"v_mul_f32 {e1}, {s1_}, {l1}")
        a(f"v_cvt_pk_bf16_f32 {outr}, {e0}, {e1}")


def gen_k1(a, opt):
    MISH_EXACT = opt.get("mish_exact", 0)
    BUF = 38912
    OA, OBU, OW1 = 0, 16384, 26624
    L_E = 3 * BUF
    L_T = L_E + 5120
    L_W2 = L_T + 1280
    LDS1 = L_W2 + 8192

    SX, SB, SW1, SWS, SDBG, SW2 = 40, 44, 48, 52, 56, 60
    s_m, s_j, s_w = 64, 65, 66
    s_dA, s_dB, s_dW = 67, 68, 69
    s_kx, s_kw = 70, 71
    s_c = 72
    s_fill = 73
    s_rd = 74
    s_wv = 75
    s_t0, s_t1, s_t2, s_t3 = 76, 77, 78, 79
    s_to = 81

    v_lane = 1
    L = "v1"
    ACC = 64
    NV = 152

    def acc(n, s):
        b = ACC + n * 8 + s * 4
        return f"v[{b}:{b+3}]"

    def fa(q, s):
        return q * 52 + s * 4

    def fb(q, n):
        return q * 52 + 8 + n * 4

    a.label("k1_kernel")
    a("s_cmp_ge_u32 s2, 256")
    a("s_cbranch_scc1 k1_end")
    a.stamp(0)
    a("s_load_dwordx8 s[16:23], s[0:1], 0")
    a("s_load_dwordx2 s[24:25], s[0:1], 32")
    a("s_load_dwordx2 s[26:27], s[0:1], 56")
    a("s_load_dwordx8 s[28:35], s[0:1], 80")
    a("s_load_dwordx4 s[36:39], s[0:1], 120")
    a("v_lshrrev_b32 v2, 6, v0")
    a(f"v_and_b32 v{v_lane}, 63, v0")
    a("s_nop 0")
    a(f"v_readfirstlane_b32 s{s_wv}, v2")
    MA = opt.get("k1_ma", 8)
    NB = 32 // MA
    XM = 16 // MA
    a(f"s_and_b32 s{s_t0}, s2, 7")
    a(f"s_lshr_b32 s{s_t1}, s2, 3")
    a(f"s_and_b32 s{s_t2}, s{s_t0}, {XM-1}")
    a(f"s_lshr_b32 s{s_t3}, s{s_t0}, {XM.bit_length()-1}")
    a(f"s_mul_i32 s{s_m}, s{s_t2}, {MA}")
    a(f"s_and_b32 s{s_t2}, s{s_t1}, {MA-1}")
    a(f"s_add_u32 s{s_m}, s{s_m}, s{s_t2}")
    a(f"s_mul_i32 s{s_j}, s{s_t3}, {NB}")
    a(f"s_lshr_b32 s{s_t2}, s{s_t1}, {MA.bit_length()-1}")
    a(f"s_add_u32 s{s_j}, s{s_j}, s{s_t2}")
    a(f"s_and_b32 s{s_w}, s{s_wv}, 3")
    a(f"s_cmp_ge_u32 s{s_wv}, 4")
    a("s_cbranch_scc0 k1_compute")

    v_oA = [2, 3, 4, 5]
    v_oB = [6, 7, 8]
    v_oW = [9, 10, 11]
    t0, t1, t2, t3, t4, t5 = [f"v{x}" for x in range(24, 30)]
    a(f"s_lshl_b32 s{s_t0}, s{s_m}, 7")
    a(f"s_lshl_b32 s{s_t1}, s{s_w}, 5")
    a(f"s_add_u32 s{s_t0}, s{s_t0}, s{s_t1}")
    a(f"v_lshrrev_b32 {t0}, 3, {L}")
    a(f"v_add_u32 {t0}, s{s_t0}, {t0}")
    a(f"v_mul_u32_u24 {t0}, 1280, {t0}")
    a(f"v_bfe_u32 {t1}, {L}, 4, 1")
    a(f"v_and_b32 {t2}, 7, {L}")
    a(f"v_xor_b32 {t1}, {t1}, {t2}")
    for i in range(4):
        a(f"v_xor_b32 {t2}, {i<<1}, {t1}")
        a(f"v_lshlrev_b32 {t2}, 4, {t2}")
        a(f"v_add_u32 {t2}, {t0}, {t2}")
        a(f"v_add_u32 v{v_oA[i]}, {i*8*1280}, {t2}")
    a(f"s_mul_i32 s{s_t0}, s{s_w}, 20")
    a(f"s_lshr_b32 s{s_t1}, s{s_w}, 1")
    a(f"s_mul_i32 s{s_t2}, s{s_t1}, 40")
    a(f"s_mul_i32 s{s_t3}, s{s_j}, 40")
    a(f"s_sub_u32 s{s_t3}, s{s_t3}, s{s_t2}")
    for i in range(3):
        a(f"v_lshrrev_b32 {t0}, 3, {L}")
        a(f"v_add_u32 {t0}, s{s_t0}, {t0}")
        if i:
            a(f"v_add_u32 {t0}, {8*i}, {t0}")
        a(f"v_and_b32 {t1}, 6, {t0}")
        a(f"v_or_b32 {t1}, s{s_t1}, {t1}")
        a(f"v_and_b32 {t2}, 7, {L}")
        a(f"v_xor_b32 {t1}, {t1}, {t2}")
        a(f"v_lshlrev_b32 {t1}, 4, {t1}")
        a(f"v_add_u32 {t0}, s{s_t3}, {t0}")
        a(f"v_mul_u32_u24 {t0}, 1280, {t0}")
        a(f"v_add_u32 v{v_oB[i]}, {t0}, {t1}")
    a(f"s_lshl_b32 s{s_t0}, s{s_w}, 4")
    a(f"s_mul_i32 s{s_t1}, s{s_j}, 192")
    for i in range(3):
        a(f"v_add_u32 {t0}, {i*64}, {L}")
        a(f"v_mul_u32_u24 {t1}, 0x5556, {t0}")
        a(f"v_lshrrev_b32 {t1}, 18, {t1}")
        a(f"v_mul_u32_u24 {t2}, 12, {t1}")
        a(f"v_sub_u32 {t2}, {t0}, {t2}")
        a(f"v_lshrrev_b32 {t3}, 1, {t2}")
        a(f"v_bfe_u32 {t4}, {t1}, 3, 1")
        a(f"v_sub_u32 {t3}, {t3}, {t4}")
        a(f"v_add_u32 {t4}, 6, {t3}")
        a(f"v_cmp_gt_i32 vcc, 0, {t3}")
        a("s_nop 1")
        a(f"v_cndmask_b32 {t3}, {t3}, {t4}, vcc")
        a(f"v_and_b32 {t2}, 1, {t2}")
        a(f"v_lshl_add_u32 {t3}, {t3}, 1, {t2}")
        a(f"v_lshlrev_b32 {t3}, 4, {t3}")
        a(f"v_add_u32 {t1}, s{s_t0}, {t1}")
        a(f"v_mul_u32_u24 {t1}, 3072, {t1}")
        a(f"v_add_u32 {t1}, s{s_t1}, {t1}")
        a(f"v_add_u32 v{v_oW[i]}, {t1}, {t3}")
    a(f"s_lshl_b32 s{s_dA}, s{s_w}, 12")
    a(f"s_mul_i32 s{s_dB}, s{s_w}, 2560")
    a(f"s_add_u32 s{s_dB}, s{s_dB}, {OBU}")
    a(f"s_mul_i32 s{s_dW}, s{s_w}, 3072")
    a(f"s_add_u32 s{s_dW}, s{s_dW}, {OW1}")
    if opt.get("rot", 1):
        a(f"s_mul_i32 s{s_t0}, s{s_m}, {opt.get('k1_rm', 1)}")
        a(f"s_mul_i32 s{s_t1}, s{s_j}, {opt.get('k1_rj', 3)}")
        a(f"s_add_u32 s{s_t0}, s{s_t0}, s{s_t1}")
        RM1 = opt.get("k1_rmod", 10)
        a(f"s_mul_i32 s{s_t1}, s{s_t0}, {65536 // RM1 + 1}")
        a(f"s_lshr_b32 s{s_t1}, s{s_t1}, 16")
        a(f"s_mul_i32 s{s_t1}, s{s_t1}, {RM1}")
        a(f"s_sub_u32 s{s_t0}, s{s_t0}, s{s_t1}")
        a(f"s_lshl_b32 s{s_kx}, s{s_t0}, 7")
        a(f"s_mul_i32 s{s_kw}, s{s_t0}, {64*3072}")
    else:
        a(f"s_mov_b32 s{s_kx}, 0")
        a(f"s_mov_b32 s{s_kw}, 0")
    a(f"s_mov_b32 s{s_fill}, 0")
    a("s_waitcnt lgkmcnt(0)")
    a.stamp(1)
    srd(a, SX, 16, 2621440)
    a(f"s_cmp_ge_u32 s{s_w}, 2")
    a(f"s_cselect_b32 s{s_t0}, s24, s22")
    a(f"s_cselect_b32 s{s_t1}, s25, s23")
    srd(a, SB, s_t0, 819200)
    srd(a, SW1, 28, 1966080)

    def dma_chunk():
        for i in range(4):
            a(f"s_add_u32 s{s_t0}, s{s_dA}, s{s_fill}")
            a(f"s_add_u32 m0, s{s_t0}, {i*1024}")
            a("s_nop 0")
            a(f"buffer_load_dwordx4 v{v_oA[i]}, s[{SX}:{SX+3}], s{s_kx} offen lds")
        for i in range(3):
            a(f"s_add_u32 s{s_t0}, s{s_dW}, s{s_fill}")
            a(f"s_add_u32 m0, s{s_t0}, {i*1024}")
            a("s_nop 0")
            a(f"buffer_load_dwordx4 v{v_oW[i]}, s[{SW1}:{SW1+3}], s{s_kw} offen lds")
        for i in range(3):
            a(f"s_add_u32 s{s_t0}, s{s_dB}, s{s_fill}")
            a(f"s_add_u32 m0, s{s_t0}, {i*1024}")
            if i == 2:
                a("s_mov_b64 exec, 0xffffffff")
                a(f"buffer_load_dwordx4 v{v_oB[i]}, s[{SB}:{SB+3}], s{s_kx} offen lds")
                a("s_mov_b64 exec, -1")
            else:
                a("s_nop 0")
                a(f"buffer_load_dwordx4 v{v_oB[i]}, s[{SB}:{SB+3}], s{s_kx} offen lds")
        a(f"s_add_u32 s{s_kx}, s{s_kx}, 128")
        a(f"s_add_u32 s{s_kw}, s{s_kw}, {64*3072}")
        a(f"s_cmp_ge_u32 s{s_kx}, 1280")
        a(f"s_cselect_b32 s{s_kx}, 0, s{s_kx}")
        a(f"s_cselect_b32 s{s_kw}, 0, s{s_kw}")
        a(f"s_add_u32 s{s_fill}, s{s_fill}, {BUF}")
        a(f"s_cmp_ge_u32 s{s_fill}, {3*BUF}")
        a(f"s_cselect_b32 s{s_fill}, 0, s{s_fill}")

    dma_chunk()
    srd(a, SWS, 38, WS_SIZE)
    srd(a, SDBG, 36, 256)
    srd(a, SW2, 32, 1966080)
    a("s_cmp_ge_u32 s2, 240")
    a("s_cbranch_scc1 k1_now2a")
    a(f"s_mul_i32 s{s_t0}, s2, 0x199a")
    a(f"s_lshr_b32 s{s_t0}, s{s_t0}, 16")
    a(f"s_mul_i32 s{s_t1}, s{s_t0}, 10")
    a(f"s_sub_u32 s{s_t1}, s2, s{s_t1}")
    a(f"s_lshl_b32 s{s_t0}, s{s_t0}, 6")
    a(f"s_lshl_b32 s{s_t2}, s{s_w}, 4")
    a(f"s_add_u32 s{s_t0}, s{s_t0}, s{s_t2}")
    a(f"s_mul_i32 s{s_t0}, s{s_t0}, 1280")
    a(f"s_lshl_b32 s{s_t1}, s{s_t1}, 7")
    a(f"s_add_u32 s{s_t0}, s{s_t0}, s{s_t1}")
    a(f"v_lshrrev_b32 {t0}, 3, {L}")
    a(f"v_mul_u32_u24 {t0}, 1280, {t0}")
    a(f"v_and_b32 {t1}, 7, {L}")
    a(f"v_lshl_add_u32 {t0}, {t1}, 4, {t0}")
    a(f"s_lshl_b32 s{s_t2}, s{s_w}, 11")
    a(f"s_add_u32 m0, s{s_t2}, {L_W2}")
    a("s_nop 0")
    a(f"buffer_load_dwordx4 {t0}, s[{SW2}:{SW2+3}], s{s_t0} offen lds")
    a(f"s_add_u32 m0, s{s_t2}, {L_W2+1024}")
    a(f"s_add_u32 s{s_t0}, s{s_t0}, {8*1280}")
    a(f"buffer_load_dwordx4 {t0}, s[{SW2}:{SW2+3}], s{s_t0} offen lds")
    a.label("k1_now2a")
    pc = [30, 31, 32]
    gx = list(range(64, 84))
    gw = list(range(84, 104))
    a(f"s_cmp_eq_u32 s{s_w}, 0")
    a("s_cbranch_scc0 k1_p_notw0")
    a(f"s_mul_i32 s{s_t0}, s{s_j}, 40")
    a(f"v_min_u32 {t0}, 39, {L}")
    a(f"v_add_u32 {t0}, s{s_t0}, {t0}")
    a(f"v_lshlrev_b32 {t0}, 1, {t0}")
    a(f"global_load_ushort v{pc[0]}, {t0}, s[18:19]")
    a(f"global_load_ushort v{pc[1]}, {t0}, s[20:21]")
    a(f"global_load_ushort v{pc[2]}, {t0}, s[26:27]")
    a.label("k1_p_notw0")
    a(f"s_cmp_ge_u32 s{s_w}, 2")
    a("s_cbranch_scc0 k1_p_notgate")
    a(f"v_subrev_u32 {t0}, 384, v0")
    a(f"v_lshrrev_b32 {t1}, 4, {t0}")
    a(f"s_lshl_b32 s{s_t0}, s{s_m}, 7")
    a(f"s_lshl_b32 s{s_t1}, s{s_j}, 3")
    a(f"s_add_u32 s{s_t0}, s{s_t0}, s{s_t1}")
    a(f"v_add_u32 {t1}, s{s_t0}, {t1}")
    a(f"v_mul_u32_u24 {t1}, 1280, {t1}")
    a(f"v_and_b32 {t0}, 15, {t0}")
    a(f"v_lshlrev_b32 {t0}, 4, {t0}")
    a(f"v_add_u32 {t1}, {t1}, {t0}")
    for i in range(5):
        a(f"global_load_dwordx4 v[{gx[4*i]}:{gx[4*i+3]}], {t1}, s[16:17] offset:{256*i}")
        a(f"global_load_dwordx4 v[{gw[4*i]}:{gw[4*i+3]}], {t0}, s[34:35] offset:{256*i}")
    a.label("k1_p_notgate")
    dma_chunk()
    a.stamp(2)
    a("s_waitcnt vmcnt(10)")
    a("s_barrier")
    dma_chunk()
    a(f"s_mov_b32 s{s_c}, 0")
    a.label("k1_lloop")
    a("s_waitcnt vmcnt(10)")
    a("s_barrier")
    dma_chunk()
    a(f"s_add_u32 s{s_c}, s{s_c}, 1")
    a(f"s_cmp_lt_u32 s{s_c}, 7")
    a("s_cbranch_scc1 k1_lloop")
    a(f"s_cmp_eq_u32 s{s_w}, 0")
    a("s_cbranch_scc0 k1_c_notw0")
    lre, lim, ldt = [f"v{x}" for x in pc]
    c = [f"v{x}" for x in range(34, 54)]
    a(f"v_lshlrev_b32 {lre}, 16, {lre}")
    a(f"v_lshlrev_b32 {lim}, 16, {lim}")
    a(f"v_lshlrev_b32 {ldt}, 16, {ldt}")
    a(f"s_mov_b32 s{s_t0}, {LOG2E:#x}")
    a(f"s_mov_b32 s{s_t1}, {INV2PI:#x}")
    a(f"v_mul_f32 {ldt}, s{s_t0}, {ldt}")
    a(f"v_exp_f32 {ldt}, {ldt}")
    a("s_nop 0")
    a(f"v_cvt_pk_bf16_f32 {ldt}, {ldt}, {ldt}")
    a(f"v_lshlrev_b32 {ldt}, 16, {ldt}")
    a(f"v_mul_f32 {c[0]}, {ldt}, {lre}")
    a(f"v_mul_f32 {c[1]}, {ldt}, {lim}")
    a(f"v_mul_f32 {c[0]}, s{s_t0}, {c[0]}")
    a(f"v_exp_f32 {c[0]}, {c[0]}")
    a(f"v_mul_f32 {c[1]}, s{s_t1}, {c[1]}")
    a(f"v_fract_f32 {c[1]}, {c[1]}")
    a(f"v_cos_f32 {c[2]}, {c[1]}")
    a(f"v_sin_f32 {c[3]}, {c[1]}")
    a("s_nop 0")
    a(f"v_mul_f32 {c[4]}, {c[0]}, {c[2]}")
    a(f"v_mul_f32 {c[5]}, {c[0]}, {c[3]}")
    a(f"v_mul_f32 {c[12]}, {lre}, {lre}")
    a(f"v_fmac_f32 {c[12]}, {lim}, {lim}")
    a(f"v_rcp_f32 {c[13]}, {c[12]}")
    a("s_nop 0")
    a(f"v_fma_f32 {c[14]}, -{c[12]}, {c[13]}, 1.0")
    a(f"v_fmac_f32 {c[13]}, {c[14]}, {c[13]}")
    a(f"v_add_f32 {c[14]}, -1.0, {c[4]}")
    a(f"v_mul_f32 {c[6]}, {c[14]}, {lre}")
    a(f"v_fmac_f32 {c[6]}, {c[5]}, {lim}")
    a(f"v_mul_f32 {c[6]}, {c[6]}, {c[13]}")
    a(f"v_mul_f32 {c[7]}, {c[5]}, {lre}")
    a(f"v_fma_f32 {c[7]}, -{c[14]}, {lim}, {c[7]}")
    a(f"v_mul_f32 {c[7]}, {c[7]}, {c[13]}")

    def csq(dr, di, sr, si):
        a(f"v_mul_f32 {c[15]}, {si}, {si}")
        a(f"v_fma_f32 {dr if dr != sr else c[16]}, {sr}, {sr}, -{c[15]}")
        a(f"v_mul_f32 {c[15]}, {sr}, {si}")
        a(f"v_add_f32 {di}, {c[15]}, {c[15]}")
        if dr == sr:
            a(f"v_mov_b32 {dr}, {c[16]}")
    csq(c[8], c[9], c[4], c[5])
    csq(c[8], c[9], c[8], c[9])
    csq(c[8], c[9], c[8], c[9])
    csq(c[10], c[11], c[8], c[9])
    csq(c[10], c[11], c[10], c[11])
    csq(c[10], c[11], c[10], c[11])
    csq(c[10], c[11], c[10], c[11])
    a(f"v_lshlrev_b32 {c[15]}, 5, {L}")
    a(f"v_add_u32 {c[15]}, {L_T}, {c[15]}")
    a(f"v_cmp_gt_u32 vcc, 40, {L}")
    a(f"s_and_saveexec_b64 s[{s_t2}:{s_t2+1}], vcc")
    a(f"ds_write_b128 {c[15]}, v[38:41]")
    a(f"ds_write_b128 {c[15]}, v[42:45] offset:16")
    a(f"s_mov_b64 exec, s[{s_t2}:{s_t2+1}]")
    a.label("k1_c_notw0")
    a("s_waitcnt vmcnt(10) lgkmcnt(0)")
    a("s_barrier")
    a("s_waitcnt vmcnt(0)")
    a("s_barrier")
    e0_, e1_, e2_, e3_ = t0, t1, t2, t3
    a("s_cmp_ge_u32 s2, 240")
    a(f"s_cbranch_scc1 k1_now2c")
    a(f"v_and_b32 {e0_}, 15, {L}")
    a(f"v_lshrrev_b32 {e1_}, 4, {L}")
    a(f"v_lshrrev_b32 {e2_}, 2, {e0_}")
    a(f"v_lshl_add_u32 {e2_}, {e1_}, 3, {e2_}")
    a(f"v_lshlrev_b32 {e2_}, 7, {e2_}")
    a(f"v_and_b32 {e3_}, 3, {e0_}")
    a(f"v_lshl_add_u32 {e2_}, {e3_}, 3, {e2_}")
    a(f"s_lshl_b32 s{s_t0}, s{s_w}, 5")
    a(f"s_add_u32 s{s_t0}, s{s_t0}, {L_W2}")
    a(f"v_add_u32 {e2_}, s{s_t0}, {e2_}")
    wq = list(range(104, 112))
    for hf in range(2):
        for h in range(2):
            a(f"ds_read_b64_tr_b16 v[{wq[4*hf+2*h]}:{wq[4*hf+2*h+1]}], {e2_} offset:{hf*4096 + h*512}")
    a(f"s_mul_i32 s{s_t0}, s2, 0x199a")
    a(f"s_lshr_b32 s{s_t0}, s{s_t0}, 16")
    a(f"s_mul_i32 s{s_t1}, s{s_t0}, 10")
    a(f"s_sub_u32 s{s_t1}, s2, s{s_t1}")
    a(f"s_lshl_b32 s{s_t1}, s{s_t1}, 6")
    a(f"s_lshl_b32 s{s_t2}, s{s_w}, 4")
    a(f"s_add_u32 s{s_t1}, s{s_t1}, s{s_t2}")
    a(f"v_add_u32 {e0_}, s{s_t1}, {e0_}")
    a(f"v_mul_u32_u24 {e0_}, 3072, {e0_}")
    a(f"v_lshl_add_u32 {e0_}, {e1_}, 4, {e0_}")
    a(f"s_lshl_b32 s{s_t0}, s{s_t0}, 7")
    a(f"s_add_u32 s{s_t0}, s{s_t0}, {WS_W2T:#x}")
    a("s_waitcnt lgkmcnt(0)")
    a(f"s_cmp_eq_u32 s{s_w}, 0")
    a("s_cbranch_scc1 k1_chainwave")
    a(f"buffer_store_dwordx4 v[{wq[0]}:{wq[3]}], {e0_}, s[{SWS}:{SWS+3}], s{s_t0} offen")
    a(f"buffer_store_dwordx4 v[{wq[4]}:{wq[7]}], {e0_}, s[{SWS}:{SWS+3}], s{s_t0} offen offset:64")
    a.label("k1_now2c")
    a(f"s_cmp_ge_u32 s{s_w}, 2")
    a("s_cbranch_scc0 k1_g_skip")
    accg = "v34"
    u = [f"v{x}" for x in range(35, 43)]
    a(f"v_mov_b32 {accg}, 0")
    for i in range(20):
        xr, wr = f"v{gx[i]}", f"v{gw[i]}"
        a(f"v_lshlrev_b32 {u[0]}, 16, {xr}")
        a(f"v_and_b32 {u[1]}, 0xffff0000, {xr}")
        a(f"v_lshlrev_b32 {u[2]}, 16, {wr}")
        a(f"v_and_b32 {u[3]}, 0xffff0000, {wr}")
        a(f"v_mul_f32 {u[0]}, {u[0]}, {u[2]}")
        a(f"v_mul_f32 {u[1]}, {u[1]}, {u[3]}")
        a(f"v_cvt_pk_bf16_f32 {u[0]}, {u[0]}, {u[1]}")
        a(f"v_lshlrev_b32 {u[1]}, 16, {u[0]}")
        a(f"v_and_b32 {u[0]}, 0xffff0000, {u[0]}")
        a(f"v_add_f32 {accg}, {accg}, {u[1]}")
        a(f"v_add_f32 {accg}, {accg}, {u[0]}")
    for sh in (8, 4, 2, 1):
        a("s_nop 1")
        a(f"v_add_f32_dpp {accg}, {accg}, {accg} row_ror:{sh} row_mask:0xf bank_mask:0xf")
    a("s_nop 0")
    a(f"v_cvt_pk_bf16_f32 {accg}, {accg}, {accg}")
    a(f"v_lshlrev_b32 {accg}, 16, {accg}")
    a(f"v_mul_f32 {accg}, 0xbfb8aa3b, {accg}")
    a(f"v_exp_f32 {accg}, {accg}")
    a("s_nop 0")
    a(f"v_add_f32 {accg}, 1.0, {accg}")
    a(f"v_rcp_f32 {accg}, {accg}")
    a("s_nop 0")
    a(f"v_cvt_pk_bf16_f32 {accg}, {accg}, {accg}")
    a(f"v_lshlrev_b32 {accg}, 16, {accg}")
    a(f"v_subrev_u32 {u[0]}, 384, v0")
    a(f"v_lshrrev_b32 {u[0]}, 4, {u[0]}")
    a(f"s_lshl_b32 s{s_t0}, s{s_m}, 7")
    a(f"s_lshl_b32 s{s_t1}, s{s_j}, 3")
    a(f"s_add_u32 s{s_t0}, s{s_t0}, s{s_t1}")
    a(f"v_add_u32 {u[0]}, s{s_t0}, {u[0]}")
    a(f"v_lshlrev_b32 {u[0]}, 2, {u[0]}")
    a(f"v_add_u32 {u[0]}, {WS_G:#x}, {u[0]}")
    a(f"v_and_b32 {u[1]}, 15, {L}")
    a(f"v_cmp_eq_u32 vcc, 0, {u[1]}")
    a(f"s_and_saveexec_b64 s[{s_t2}:{s_t2+1}], vcc")
    a(f"buffer_store_dword {accg}, {u[0]}, s[{SWS}:{SWS+3}], 0 offen")
    a(f"s_mov_b64 exec, s[{s_t2}:{s_t2+1}]")
    a.label("k1_g_skip")
    a(f"s_cmp_eq_u32 s{s_w}, 0")
    a("s_cbranch_scc0 k1_end")
    a.label("k1_chainwave")
    a("s_setprio 3")
    a(f"v_mov_b32 v112, {e0_}")
    a(f"s_mov_b32 s83, s{s_t0}")
    vcol = [2, 3]; vP = [4, 5]; vT = [6, 7]; a8 = [8, 9]; b8 = [10, 11]; a128 = [12, 13]; b128 = [14, 15]
    vCaddr = [16, 17]
    vE = [list(range(64, 80)), list(range(80, 96))]
    vG = [list(range(34, 64, 2)), list(range(114, 144, 2))]
    vS = vG
    a(f"v_mov_b32 v{vcol[0]}, {L}")
    a(f"v_add_u32 v{vcol[1]}, 64, {L}")
    a(f"v_min_u32 v{vcol[1]}, 79, v{vcol[1]}")
    for q in range(2):
        a(f"v_lshrrev_b32 {t0}, 1, v{vcol[q]}")
        a(f"v_lshlrev_b32 {t0}, 5, {t0}")
        a(f"v_add_u32 {t0}, {L_T}, {t0}")
        a(f"ds_read_b128 v[{96+4*q}:{99+4*q}], {t0} offset:16")
        a(f"v_lshlrev_b32 v{vCaddr[q]}, 2, v{vcol[q]}")
        a(f"v_add_u32 v{vCaddr[q]}, {L_E}, v{vCaddr[q]}")
    a(f"v_and_b32 {t1}, 1, {L}")
    a(f"v_cmp_eq_u32 vcc, 1, {t1}")
    a("s_waitcnt lgkmcnt(0)")
    for q in range(2):
        b = 96 + 4 * q
        a(f"v_mov_b32 v{a8[q]}, v{b}")
        a(f"v_sub_f32 {t2}, 0, v{b+1}")
        a(f"v_cndmask_b32 v{b8[q]}, {t2}, v{b+1}, vcc")
        a(f"v_mov_b32 v{a128[q]}, v{b+2}")
        a(f"v_sub_f32 {t2}, 0, v{b+3}")
        a(f"v_cndmask_b32 v{b128[q]}, {t2}, v{b+3}, vcc")
    a(f"s_cmp_eq_u32 s{s_m}, 0")
    a("s_cbranch_scc1 k1_cpoll_done")
    a(f"s_lshl_b32 s{s_t0}, s{s_j}, 4")
    a(f"v_and_b32 {t1}, 15, {L}")
    a(f"v_cmp_le_u32 s[{s_t2}:{s_t2+1}], s{s_m}, {t1}")
    a(f"v_add_u32 {t1}, s{s_t0}, {t1}")
    a(f"s_mov_b32 s{s_to}, 0")
    a.label("k1_cpoll")
    a(f"buffer_load_ubyte {t0}, {t1}, s[{SDBG}:{SDBG+3}], 0 offen sc1")
    a("s_waitcnt vmcnt(0)")
    a(f"v_cmp_ne_u32 vcc, 0, {t0}")
    a(f"s_or_b64 vcc, vcc, s[{s_t2}:{s_t2+1}]")
    a("s_cmp_eq_u64 vcc, -1")
    a("s_cbranch_scc1 k1_cpoll_done")
    a("s_sleep 8")
    a(f"s_add_u32 s{s_to}, s{s_to}, 1")
    a(f"s_cmp_lt_u32 s{s_to}, 0x80000")
    a("s_cbranch_scc1 k1_cpoll")
    a.label("k1_cpoll_done")
    a("s_barrier")
    a.stamp(3)
    for G in range(16):
        for q in range(2):
            a(f"ds_read_b32 v{vE[q][G]}, v{vCaddr[q]} offset:{G*320}")
        if G == 6 or G == 13:
            a("s_waitcnt lgkmcnt(0)")
    a("s_waitcnt lgkmcnt(0)")
    for q in range(2):
        a(f"v_mov_b32 v{vP[q]}, v{vE[q][0]}")
    a("s_nop 0")

    def chain_step(aa, bb, src):
        for q in range(2):
            a(f"v_fma_f32 v{vT[q]}, v{aa[q]}, v{vP[q]}, v{src[q]}")
        for q in range(2):
            a(f"v_fmac_f32_dpp v{vT[q]}, v{vP[q]}, v{bb[q]} {DPP_SWAP}")
        for q in range(2):
            a(f"v_mov_b32 v{vP[q]}, v{vT[q]}")
    for G in range(1, 16):
        chain_step(a8, b8, [vE[0][G], vE[1][G]])
    a(f"s_lshl_b32 s{s_t0}, s{s_m}, 4")
    a(f"s_add_u32 s{s_t0}, s{s_t0}, s{s_j}")
    a(f"s_mul_i32 s{s_t0}, s{s_t0}, 640")
    a(f"s_add_u32 s{s_t0}, s{s_t0}, {WS_S:#x}")
    a(f"v_lshlrev_b32 {t0}, 3, {L}")
    a(f"v_mov_b32 v18, v{vP[0]}")
    a(f"v_mov_b32 v19, 1")
    a(f"v_mov_b32 v20, v{vP[1]}")
    a(f"v_mov_b32 v21, 1")
    a(f"buffer_store_dwordx2 v[18:19], {t0}, s[{SWS}:{SWS+3}], s{s_t0} offen sc1")
    a("s_mov_b64 exec, 0xffff")
    a(f"buffer_store_dwordx2 v[20:21], {t0}, s[{SWS}:{SWS+3}], s{s_t0} offen offset:512 sc1")
    a("s_mov_b64 exec, -1")
    a.stamp(4)
    for q in range(2):
        a(f"v_mov_b32 v{vP[q]}, 0")
    a(f"s_cmp_eq_u32 s{s_m}, 0")
    a("s_cbranch_scc1 k1_e5_chain2")
    a(f"v_lshlrev_b32 {t0}, 3, v{vcol[0]}")
    a(f"v_lshlrev_b32 {t1}, 3, v{vcol[1]}")
    a(f"s_mov_b32 s{s_to}, 0")
    a.label("k1_poll")
    a(f"s_mul_i32 s{s_t0}, s{s_j}, 640")
    a(f"s_add_u32 s{s_t0}, s{s_t0}, {WS_S:#x}")
    for mp in range(15):
        a(f"buffer_load_dwordx2 v[{vG[0][mp]}:{vG[0][mp]+1}], {t0}, s[{SWS}:{SWS+3}], s{s_t0} offen sc1")
        a(f"buffer_load_dwordx2 v[{vG[1][mp]}:{vG[1][mp]+1}], {t1}, s[{SWS}:{SWS+3}], s{s_t0} offen sc1")
        if mp < 14:
            a(f"s_add_u32 s{s_t0}, s{s_t0}, {16*640}")
            a(f"s_cmp_eq_u32 s{s_m}, {mp+1}")
            a("s_cbranch_scc1 k1_poll_w")
    a.label("k1_poll_w")
    a("s_waitcnt vmcnt(0)")
    a(f"v_mov_b32 {t2}, 1")
    for mp in range(15):
        a(f"v_and_b32 {t2}, {t2}, v{vG[0][mp]+1}")
        a(f"v_and_b32 {t2}, {t2}, v{vG[1][mp]+1}")
        if mp < 14:
            a(f"s_cmp_eq_u32 s{s_m}, {mp+1}")
            a("s_cbranch_scc1 k1_poll_c")
    a.label("k1_poll_c")
    a(f"v_cmp_eq_u32 vcc, 1, {t2}")
    a("s_cmp_eq_u64 vcc, -1")
    a("s_cbranch_scc1 k1_poll_done")
    a(f"s_add_u32 s{s_to}, s{s_to}, 1")
    a(f"s_cmp_lt_u32 s{s_to}, 0x40000")
    a("s_cbranch_scc1 k1_poll")
    a.label("k1_poll_done")
    a.stamp(5)
    for mp in range(15):
        chain_step(a128, b128, [vS[0][mp], vS[1][mp]])
        if mp < 14:
            a(f"s_cmp_eq_u32 s{s_m}, {mp+1}")
            a("s_cbranch_scc1 k1_e5_chain2")
    a.label("k1_e5_chain2")
    a("s_nop 1")
    for G in range(16):
        a(f"ds_write_b32 v{vCaddr[0]}, v{vP[0]} offset:{G*320}")
        a("s_mov_b64 exec, 0xffff")
        a(f"ds_write_b32 v{vCaddr[1]}, v{vP[1]} offset:{G*320}")
        a("s_mov_b64 exec, -1")
        if G < 15:
            chain_step(a8, b8, [vE[0][G], vE[1][G]])
    a("s_waitcnt lgkmcnt(0)")
    a("s_barrier")
    a.stamp(6)
    a("s_cmp_ge_u32 s2, 240")
    a(f"s_cbranch_scc1 k1_cw_done")
    a(f"buffer_store_dwordx4 v[{wq[0]}:{wq[3]}], v112, s[{SWS}:{SWS+3}], s83 offen")
    a(f"buffer_store_dwordx4 v[{wq[4]}:{wq[7]}], v112, s[{SWS}:{SWS+3}], s83 offen offset:64")
    a.label("k1_cw_done")
    a.stamp(7)
    a.stamp_flush(SWS, 0xF20000, 8, 24, 25, s_w)
    a("s_endpgm")

    a.label("k1_compute")
    v_rA = [12, 13]
    v_rB = [14, 15]
    v_rW = [16, 17]
    v_b1 = [18, 19, 20, 21, 22, 23]
    a(f"v_and_b32 {t0}, 15, {L}")
    a(f"v_lshrrev_b32 {t1}, 4, {L}")
    a(f"v_lshrrev_b32 {t2}, 2, {t0}")
    a(f"v_and_b32 {t3}, 3, {t0}")
    a(f"v_lshl_add_u32 {t3}, {t2}, 3, {t3}")
    a(f"s_lshl_b32 s{s_t0}, s{s_w}, 5")
    a(f"v_add_u32 {t3}, s{s_t0}, {t3}")
    a(f"v_lshlrev_b32 {t3}, 7, {t3}")
    a(f"v_bfe_u32 {t4}, {t0}, 1, 1")
    a(f"v_lshl_add_u32 {t4}, {t2}, 1, {t4}")
    a(f"v_xor_b32 {t4}, {t4}, {t1}")
    a(f"v_lshl_add_u32 v{v_rA[0]}, {t4}, 4, {t3}")
    a(f"v_xor_b32 v{v_rA[1]}, 64, v{v_rA[0]}")
    a(f"v_and_b32 {t2}, 1, {t0}")
    a(f"v_lshrrev_b32 {t3}, 1, {t0}")
    a(f"v_mul_u32_u24 {t4}, 40, {t2}")
    a(f"v_add_u32 {t4}, {t4}, {t3}")
    a(f"v_lshlrev_b32 {t4}, 7, {t4}")
    a(f"v_and_b32 {t3}, 6, {t3}")
    a(f"v_or_b32 {t3}, {t3}, {t2}")
    a(f"v_xor_b32 {t3}, {t3}, {t1}")
    a(f"v_lshl_add_u32 {t4}, {t3}, 4, {t4}")
    a(f"v_add_u32 v{v_rB[0]}, {OBU}, {t4}")
    a(f"v_xor_b32 v{v_rB[1]}, 64, v{v_rB[0]}")
    a(f"v_lshrrev_b32 {t2}, 2, {t0}")
    a(f"v_lshl_add_u32 {t2}, {t1}, 3, {t2}")
    a(f"v_mul_u32_u24 {t2}, 192, {t2}")
    a(f"v_and_b32 {t3}, 3, {t0}")
    a(f"v_lshl_add_u32 {t2}, {t3}, 3, {t2}")
    a(f"v_add_u32 {t2}, {OW1}, {t2}")
    a(f"v_and_b32 {t3}, 1, {t1}")
    a(f"v_lshl_add_u32 v{v_rW[0]}, {t3}, 5, {t2}")
    a(f"v_mul_u32_u24 {t3}, 160, {t3}")
    a(f"v_sub_u32 {t3}, 160, {t3}")
    a(f"v_add_u32 v{v_rW[1]}, {t2}, {t3}")
    a(f"s_mov_b32 s{s_rd}, 0")
    a("s_waitcnt lgkmcnt(0)")
    srd(a, SWS, 38, WS_SIZE)
    a(f"s_mul_i32 s{s_t0}, s{s_j}, 96")
    a(f"v_and_b32 {t0}, 15, {L}")
    a(f"v_add_u32 {t0}, s{s_t0}, {t0}")
    a(f"v_lshlrev_b32 {t0}, 1, {t0}")
    for jt in range(6):
        a(f"global_load_ushort v{v_b1[jt]}, {t0}, s[30:31] offset:{32*jt}")
    srd(a, SDBG, 36, 256)
    a(f"s_cmp_eq_u32 s{s_w}, 1")
    a("s_cbranch_scc0 k1_noclr")
    a(f"s_lshl_b32 s{s_t0}, s{s_m}, 4")
    a(f"s_add_u32 s{s_t0}, s{s_t0}, s{s_j}")
    a(f"s_mul_i32 s{s_t0}, s{s_t0}, 640")
    a(f"s_add_u32 s{s_t0}, s{s_t0}, {WS_S:#x}")
    a(f"v_lshlrev_b32 {t2}, 3, {L}")
    a(f"v_mov_b32 v30, 0")
    a(f"v_mov_b32 v31, 0")
    a(f"buffer_store_dwordx2 v[30:31], {t2}, s[{SWS}:{SWS+3}], s{s_t0} offen sc1")
    a("s_mov_b64 exec, 0xffff")
    a(f"buffer_store_dwordx2 v[30:31], {t2}, s[{SWS}:{SWS+3}], s{s_t0} offen offset:512 sc1")
    a("s_mov_b64 exec, -1")
    a.label("k1_noclr")
    for r in range(88):
        a(f"v_mov_b32 v{ACC+r}, 0")
    a("s_waitcnt lgkmcnt(0)")

    def reads(q, ks):
        g = []
        for s in range(2):
            b = fa(q, s)
            g.append([f"ds_read_b128 a[{b}:{b+3}], v{v_rA[ks]} offset:{s*512}"])
        for n in range(5):
            b = fb(q, n)
            g.append([f"ds_read_b128 a[{b}:{b+3}], v{v_rB[ks]} offset:{n*1024}"])
        for n in range(6):
            b = fb(q, 5 + n)
            for h in range(2):
                if n < 5:
                    g.append([f"ds_read_b64_tr_b16 a[{b+2*h}:{b+2*h+1}], v{v_rW[0]} offset:{n*32 + ks*6144 + h*768}"])
                else:
                    g.append([f"ds_read_b64_tr_b16 a[{b+2*h}:{b+2*h+1}], v{v_rW[1]} offset:{ks*6144 + h*768}"])
        return g

    def mfmas(q):
        m = []
        for n in range(11):
            for s in range(2):
                A = fa(q, s)
                B = fb(q, n)
                m.append(f"v_mfma_f32_16x16x32_bf16 {acc(n,s)}, a[{A}:{A+3}], a[{B}:{B+3}], {acc(n,s)}")
        return m

    def addr_update():
        g = [[f"s_add_u32 s{s_t1}, s{s_rd}, {BUF}",
              f"s_cmp_ge_u32 s{s_t1}, {3*BUF}",
              f"s_cselect_b32 s{s_t1}, 0, s{s_t1}",
              f"s_sub_u32 s{s_t2}, s{s_t1}, s{s_rd}",
              f"s_mov_b32 s{s_rd}, s{s_t1}"]]
        for r in v_rA + v_rB + v_rW:
            g.append([f"v_add_u32 v{r}, s{s_t2}, v{r}"])
        return g

    a("s_barrier")
    a.stamp(1)
    emit(a, reads(0, 0))

    def body(last):
        a("s_waitcnt lgkmcnt(0)")
        interleave(a, mfmas(0), reads(1, 1))
        if not last:
            a("s_waitcnt lgkmcnt(0)")
            a("s_barrier")
            interleave(a, mfmas(1), addr_update() + reads(0, 0))
        else:
            a("s_waitcnt lgkmcnt(0)")
            interleave(a, mfmas(1), [])

    a(f"s_mov_b32 s{s_c}, 0")
    a.label("k1_loop")
    body(False)
    a(f"s_add_u32 s{s_c}, s{s_c}, 1")
    a(f"s_lshl_b32 s{s_t0}, s{s_c}, 2")
    a(f"s_add_u32 s{s_t0}, s{s_t0}, s{s_w}")
    a(f"s_cmp_eq_u32 s{s_t0}, 9")
    a("s_cbranch_scc0 k1_noclr2")
    a("s_waitcnt vmcnt(0)")
    a(f"s_lshl_b32 s{s_t0}, s{s_j}, 4")
    a(f"s_add_u32 s{s_t0}, s{s_t0}, s{s_m}")
    a(f"v_mov_b32 v30, 1")
    a(f"v_mov_b32 v31, s{s_t0}")
    a("s_mov_b64 exec, 1")
    a(f"buffer_store_byte v30, v31, s[{SDBG}:{SDBG+3}], 0 offen sc1")
    a("s_mov_b64 exec, -1")
    a.label("k1_noclr2")
    a(f"s_cmp_lt_u32 s{s_c}, 9")
    a("s_cbranch_scc1 k1_loop")
    body(True)
    a.nop(10)
    a.stamp(2)

    ca = list(range(24, 29)); cb = list(range(29, 34)); ka = list(range(34, 39)); kb = list(range(39, 44))
    vEaddr, vSt, vTt = 44, 45, 46
    T = list(range(55, 64))
    R = list(range(2, 18))
    e0_, e1_, e2_, e3_ = [f"v{x}" for x in T[:4]]
    tq = R[0:16] + [60, 61, 62, 63]
    a(f"v_bfe_u32 {e0_}, {L}, 1, 3")
    a(f"v_lshlrev_b32 {e0_}, 5, {e0_}")
    a(f"v_add_u32 {e0_}, {L_T}, {e0_}")
    for jt in range(5):
        a(f"ds_read_b128 v[{tq[4*jt]}:{tq[4*jt+3]}], {e0_} offset:{jt*256}")
    a(f"v_and_b32 {e1_}, 1, {L}")
    a(f"v_cmp_eq_u32 vcc, 1, {e1_}")
    a("s_waitcnt lgkmcnt(0)")
    for jt in range(5):
        lr, li, kr, ki = [f"v{tq[4*jt+q]}" for q in range(4)]
        a(f"v_mov_b32 v{ca[jt]}, {lr}")
        a(f"v_sub_f32 {e2_}, 0, {li}")
        a(f"v_cndmask_b32 v{cb[jt]}, {e2_}, {li}, vcc")
        a(f"v_add_f32 {e2_}, {kr}, {kr}")
        a(f"v_sub_f32 {e3_}, 0, {e2_}")
        a(f"v_cndmask_b32 v{ka[jt]}, {e2_}, {e3_}, vcc")
        a(f"v_mul_f32 v{kb[jt]}, -2.0, {ki}")
    for i in range(1, 8):
        for jt in range(5):
            a(f"v_fmac_f32 v{ACC+jt*8+i}, v{ca[jt]}, v{ACC+jt*8+i-1}")
        for jt in range(5):
            a(f"v_fmac_f32_dpp v{ACC+jt*8+i}, v{ACC+jt*8+i-1}, v{cb[jt]} {DPP_SWAP}")
    a(f"v_lshrrev_b32 {e0_}, 4, {L}")
    a(f"s_lshl_b32 s{s_t0}, s{s_w}, 2")
    a(f"v_add_u32 {e0_}, s{s_t0}, {e0_}")
    a(f"v_mul_u32_u24 {e0_}, 320, {e0_}")
    a(f"v_and_b32 {e1_}, 15, {L}")
    a(f"v_lshl_add_u32 {e0_}, {e1_}, 2, {e0_}")
    a(f"v_add_u32 v{vEaddr}, {L_E}, {e0_}")
    for jt in range(5):
        a(f"ds_write_b32 v{vEaddr}, v{ACC+jt*8+7} offset:{jt*64}")
    a("s_waitcnt lgkmcnt(0)")
    a("s_barrier")
    a.stamp(3)
    a(f"s_lshl_b32 s{s_t0}, s{s_m}, 7")
    a(f"s_lshl_b32 s{s_t1}, s{s_w}, 5")
    a(f"s_add_u32 s{s_t0}, s{s_t0}, s{s_t1}")
    a(f"v_lshrrev_b32 {e1_}, 4, {L}")
    a(f"v_lshlrev_b32 {e1_}, 3, {e1_}")
    a(f"v_add_u32 {e1_}, s{s_t0}, {e1_}")
    a(f"v_lshlrev_b32 v{vTt}, 1, {e1_}")
    a(f"s_mul_i32 s{s_t0}, s{s_j}, 96")
    a(f"s_add_u32 s{s_t0}, s{s_t0}, 1280")
    a(f"v_and_b32 {e0_}, 15, {L}")
    a(f"v_add_u32 {e0_}, s{s_t0}, {e0_}")
    a(f"v_lshlrev_b32 {e0_}, 12, {e0_}")
    a(f"v_add_u32 v{vSt}, {e0_}, v{vTt}")
    a(f"s_mov_b32 s{s_t0}, {LOG2E:#x}")
    a(f"s_mov_b32 s{s_t1}, {LN2:#x}")
    a(f"s_mov_b32 s82, 0")
    a("s_waitcnt vmcnt(0)")
    w = [f"v{x}" for x in T]
    for jt in range(6):
        n = 5 + jt
        a(f"v_lshlrev_b32 v{v_b1[jt]}, 16, v{v_b1[jt]}")
        for pr in range(4):
            mish_pair(a, MISH_EXACT, f"v{ACC+n*8+2*pr}", f"v{ACC+n*8+2*pr+1}", f"v{ACC+n*8+pr}",
                      f"v{v_b1[jt]}", w, s_t0, s_t1, s_t2)
    a.stamp(4)
    a(f"v_mov_b32 v47, v{vSt}")
    a(f"v_and_b32 {e0_}, 1, {L}")
    a(f"v_mul_u32_u24 {e0_}, 640, {e0_}")
    a(f"v_bfe_u32 {e1_}, {L}, 1, 3")
    a(f"v_add_u32 {e0_}, {e0_}, {e1_}")
    a(f"s_mul_i32 s{s_t0}, s{s_j}, 40")
    a(f"v_add_u32 {e0_}, s{s_t0}, {e0_}")
    a(f"v_lshlrev_b32 {e0_}, 12, {e0_}")
    a(f"v_add_u32 v{vSt}, {e0_}, v{vTt}")
    a("s_barrier")
    a.stamp(6)
    for jt in range(6):
        n = 5 + jt
        a(f"buffer_store_dwordx4 v[{ACC+n*8}:{ACC+n*8+3}], v47, s[{SWS}:{SWS+3}], s82 offen")
        if jt < 5:
            a(f"s_add_u32 s82, s82, {16*4096}")
    cc = R[0:5]
    ct = R[5:10]
    for jt in range(5):
        a(f"ds_read_b32 v{cc[jt]}, v{vEaddr} offset:{jt*64}")
    a("s_waitcnt lgkmcnt(0)")
    for i in range(8):
        for jt in range(5):
            a(f"v_mul_f32 v{ct[jt]}, v{ca[jt]}, v{cc[jt]}")
        for jt in range(5):
            a(f"v_fmac_f32_dpp v{ct[jt]}, v{cc[jt]}, v{cb[jt]} {DPP_SWAP}")
        for jt in range(5):
            a(f"v_add_f32 v{ACC+jt*8+i}, v{ACC+jt*8+i}, v{ct[jt]}")
        cc, ct = ct, cc
    a(f"s_mov_b32 s{s_t0}, 0")
    o8 = list(range(56, 64))
    for jt in range(5):
        ob = 12 if (jt & 1) == 0 else 2
        for i in range(8):
            a(f"v_mul_f32 v{o8[i]}, v{ka[jt]}, v{ACC+jt*8+i}")
        for i in range(8):
            a(f"v_fmac_f32_dpp v{o8[i]}, v{ACC+jt*8+i}, v{kb[jt]} {DPP_SWAP}")
        for pr in range(4):
            a(f"v_cvt_pk_bf16_f32 v{ob+pr}, v{o8[2*pr]}, v{o8[2*pr+1]}")
        a(f"buffer_store_dwordx4 v[{ob}:{ob+3}], v{vSt}, s[{SWS}:{SWS+3}], s{s_t0} offen")
        if jt < 4:
            a(f"s_add_u32 s{s_t0}, s{s_t0}, {8*4096}")
    a.stamp(7)
    a.stamp_flush(SWS, 0xF00000, 8, 56, 57, s_w)
    a.label("k1_end")
    a("s_endpgm")
    return dict(lds=LDS1, nv=NV, na=104)


def gen_k2(a, opt):
    BUF = 36864
    OA, OB = 0, 16384
    NBUF = opt.get("k2_nbuf", 4)
    LDS2 = NBUF * BUF
    SWS, SB, SOUT = 40, 44, 48
    s_mt, s_nt, s_w = 64, 65, 66
    s_dA, s_dB = 67, 68
    s_ka, s_kb = 70, 71
    s_c = 72
    s_fill = 73
    s_rd = 74
    s_wv = 75
    s_t0, s_t1, s_t2, s_t3 = 76, 77, 78, 79
    s_ci = 80
    L = "v1"
    t0, t1, t2, t3, t4, t5 = [f"v{x}" for x in range(24, 30)]
    ACC = 48
    ACA = 68
    vxr = list(range(88, 98))
    vds = list(range(98, 108))
    v_g = 108
    NV = 112

    def acc(n):
        return f"v[{ACC+4*n}:{ACC+4*n+3}]"

    def fa(q, s):
        return q * 48 + s * 24

    def fb(q, s, n):
        return q * 48 + s * 24 + 4 + n * 4

    a.label("k2_kernel")
    a("s_cmp_ge_u32 s2, 256")
    a("s_cbranch_scc1 k2_end")
    a.stamp(0)
    a("s_load_dwordx2 s[16:17], s[0:1], 0")
    a("s_load_dwordx2 s[18:19], s[0:1], 40")
    a("s_load_dwordx2 s[20:21], s[0:1], 48")
    a("s_load_dwordx2 s[22:23], s[0:1], 64")
    a("s_load_dwordx2 s[24:25], s[0:1], 112")
    a("s_load_dwordx2 s[26:27], s[0:1], 128")
    a("v_lshrrev_b32 v2, 6, v0")
    a(f"v_and_b32 v1, 63, v0")
    a("s_nop 0")
    a(f"v_readfirstlane_b32 s{s_wv}, v2")
    MA = opt.get("k2_ma", 4)
    NB = 32 // MA
    XM = 32 // MA
    a(f"s_and_b32 s{s_t0}, s2, 7")
    a(f"s_lshr_b32 s{s_t1}, s2, 3")
    a(f"s_and_b32 s{s_t2}, s{s_t0}, {XM-1}")
    a(f"s_lshr_b32 s{s_t3}, s{s_t0}, {XM.bit_length()-1}")
    a(f"s_mul_i32 s{s_mt}, s{s_t2}, {MA}")
    a(f"s_and_b32 s{s_t2}, s{s_t1}, {MA-1}")
    a(f"s_add_u32 s{s_mt}, s{s_mt}, s{s_t2}")
    a(f"s_mul_i32 s{s_nt}, s{s_t3}, {NB}")
    a(f"s_lshr_b32 s{s_t2}, s{s_t1}, {MA.bit_length()-1}")
    a(f"s_add_u32 s{s_nt}, s{s_nt}, s{s_t2}")
    a(f"s_and_b32 s{s_w}, s{s_wv}, 3")
    a(f"s_cmp_ge_u32 s{s_wv}, 4")
    a("s_cbranch_scc0 k2_compute")
    v_oA = [2, 3, 4, 5]
    v_oB = [6, 7, 8, 9, 10]
    v_oB2 = [11, 12, 13, 14, 15]
    a(f"s_lshl_b32 s{s_t0}, s{s_w}, 5")
    a(f"v_lshrrev_b32 {t0}, 3, {L}")
    a(f"v_add_u32 {t0}, s{s_t0}, {t0}")
    a(f"v_lshlrev_b32 {t0}, 12, {t0}")
    a(f"s_lshl_b32 s{s_t1}, s{s_mt}, 7")
    a(f"v_add_u32 {t0}, s{s_t1}, {t0}")
    a(f"v_bfe_u32 {t1}, {L}, 1, 2")
    a(f"v_bfe_u32 {t2}, {L}, 4, 1")
    a(f"v_xor_b32 {t1}, {t1}, {t2}")
    a(f"v_and_b32 {t2}, 1, {L}")
    for i in range(4):
        a(f"v_xor_b32 {t3}, {(i&1)<<1}, {t1}")
        a(f"v_lshl_add_u32 {t3}, {t3}, 1, {t2}")
        a(f"v_lshl_add_u32 {t3}, {t3}, 4, {t0}")
        a(f"v_add_u32 v{v_oA[i]}, {i*8*4096}, {t3}")
    a(f"s_mul_i32 s{s_t0}, s{s_w}, 20")
    a(f"s_mul_i32 s{s_t1}, s{s_nt}, 80")
    for i in range(5):
        a(f"v_lshrrev_b32 {t0}, 4, {L}")
        a(f"v_add_u32 {t0}, s{s_t0}, {t0}")
        if i:
            a(f"v_add_u32 {t0}, {4*i}, {t0}")
        a(f"v_xor_b32 {t1}, {t0}, {L}")
        a(f"v_and_b32 {t1}, 15, {t1}")
        a(f"v_lshlrev_b32 {t1}, 4, {t1}")
        a(f"v_add_u32 {t0}, s{s_t1}, {t0}")
        a(f"v_mul_u32_u24 {t2}, 1280, {t0}")
        a(f"v_add_u32 v{v_oB[i]}, {t2}, {t1}")
        a(f"v_mul_u32_u24 {t2}, 3072, {t0}")
        a(f"v_add_u32 {t2}, {t2}, {t1}")
        a(f"v_add_u32 v{v_oB2[i]}, {WS_W2T:#x}, {t2}")
    a(f"s_lshl_b32 s{s_dA}, s{s_w}, 12")
    a(f"s_mul_i32 s{s_dB}, s{s_w}, 5120")
    a(f"s_add_u32 s{s_dB}, s{s_dB}, {OB}")
    a(f"s_mov_b32 s{s_ka}, 0")
    a(f"s_mov_b32 s{s_kb}, 0")
    a(f"s_mov_b32 s{s_fill}, 0")
    a(f"s_mov_b32 s{s_ci}, 0")
    a("s_waitcnt lgkmcnt(0)")
    srd(a, SWS, 26, WS_SIZE)
    srd(a, SB, 18, 819200)
    uid = [0]
    s_ra = 81
    s_rb0 = 82
    if opt.get("rot", 1):
        a(f"s_mul_i32 s{s_t0}, s{s_mt}, {opt.get('k2_rm', 2)}")
        a(f"s_mul_i32 s{s_t1}, s{s_nt}, {opt.get('k2_rn', 1)}")
        a(f"s_add_u32 s{s_t0}, s{s_t0}, s{s_t1}")
        RM2 = opt.get("k2_rmod", 5)
        a(f"s_mul_i32 s{s_t1}, s{s_t0}, {65536 // RM2 + 1}")
        a(f"s_lshr_b32 s{s_t1}, s{s_t1}, 16")
        a(f"s_mul_i32 s{s_t1}, s{s_t1}, {RM2}")
        a(f"s_sub_u32 s{s_ra}, s{s_t0}, s{s_t1}")
        a(f"s_mov_b32 s{s_rb0}, s{s_ra}")
    else:
        a(f"s_mov_b32 s{s_ra}, 0")
        a(f"s_mov_b32 s{s_rb0}, 0")

    def dma_chunk():
        u = uid[0]
        uid[0] += 1
        a(f"s_cmp_ge_u32 s{s_ci}, 10")
        a(f"s_cbranch_scc1 k2_phb_{u}")
        a(f"s_cmp_ge_u32 s{s_ra}, 5")
        a(f"s_cselect_b32 s{SB}, s20, s18")
        a(f"s_cselect_b32 s{s_t0}, s21, s19")
        a(f"s_cselect_b32 s{s_t1}, 5, 0")
        a(f"s_and_b32 s{SB+1}, s{s_t0}, 0xffff")
        a(f"s_sub_u32 s{s_t1}, s{s_ra}, s{s_t1}")
        a(f"s_lshl_b32 s{s_kb}, s{s_t1}, 8")
        a(f"s_lshl_b32 s{s_ka}, s{s_ra}, 19")
        a(f"s_branch k2_go_{u}")
        a.label(f"k2_phb_{u}")
        a(f"s_lshl_b32 s{s_kb}, s{s_ra}, 8")
        a(f"s_add_u32 s{s_t1}, s{s_ra}, 10")
        a(f"s_lshl_b32 s{s_ka}, s{s_t1}, 19")
        a.label(f"k2_go_{u}")
        for i in range(5):
            a(f"s_add_u32 s{s_t0}, s{s_dB}, s{s_fill}")
            a(f"s_add_u32 m0, s{s_t0}, {i*1024}")
            a("s_nop 0")
            a(f"buffer_load_dwordx4 v{v_oB[i]}, s[{SB}:{SB+3}], s{s_kb} offen lds")
        for i in range(4):
            a(f"s_add_u32 s{s_t0}, s{s_dA}, s{s_fill}")
            a(f"s_add_u32 m0, s{s_t0}, {i*1024}")
            a("s_nop 0")
            a(f"buffer_load_dwordx4 v{v_oA[i]}, s[{SWS}:{SWS+3}], s{s_ka} offen lds")
        a(f"s_add_u32 s{s_fill}, s{s_fill}, {BUF}")
        a(f"s_cmp_ge_u32 s{s_fill}, {NBUF*BUF}")
        a(f"s_cselect_b32 s{s_fill}, 0, s{s_fill}")
        a(f"s_add_u32 s{s_ci}, s{s_ci}, 1")
        a(f"s_add_u32 s{s_ra}, s{s_ra}, 1")
        a(f"s_cmp_ge_u32 s{s_ci}, 10")
        a(f"s_cselect_b32 s{s_t0}, 12, 10")
        a(f"s_cmp_ge_u32 s{s_ra}, s{s_t0}")
        a(f"s_cselect_b32 s{s_ra}, 0, s{s_ra}")
        a(f"s_cmp_eq_u32 s{s_ci}, 10")
        a(f"s_cbranch_scc0 k2_sw10_{u}")
        a(f"s_mov_b32 s{SB}, s26")
        a(f"s_and_b32 s{SB+1}, s27, 0xffff")
        a(f"s_mov_b32 s{SB+2}, {WS_SIZE}")
        a(f"s_mov_b32 s{s_ra}, s{s_rb0}")
        for i in range(5):
            a(f"v_mov_b32 v{v_oB[i]}, v{v_oB2[i]}")
        a.label(f"k2_sw10_{u}")

    dma_chunk()
    dma_chunk()
    a(f"s_waitcnt vmcnt(9)")
    a("s_barrier")
    for c in range(2, NBUF):
        dma_chunk()
    a(f"s_mov_b32 s{s_c}, 0")
    a.label("k2_lloop")
    a(f"s_waitcnt vmcnt({9*(NBUF-2)})")
    a("s_barrier")
    dma_chunk()
    a(f"s_add_u32 s{s_c}, s{s_c}, 1")
    a(f"s_cmp_lt_u32 s{s_c}, {22-NBUF}")
    a("s_cbranch_scc1 k2_lloop")
    for c in range(22 - NBUF, 21):
        rem = 21 - c
        a(f"s_waitcnt vmcnt({9*(rem-1)})")
        a("s_barrier")
    a("s_endpgm")

    a.label("k2_compute")
    v_rA = 16
    v_rB = [17, 18, 19, 20]
    a(f"v_and_b32 {t0}, 15, {L}")
    a(f"v_lshrrev_b32 {t1}, 4, {L}")
    a(f"v_lshrrev_b32 {t2}, 2, {t0}")
    a(f"v_lshl_add_u32 {t3}, {t1}, 3, {t2}")
    a(f"v_lshlrev_b32 {t3}, 7, {t3}")
    a(f"v_bfe_u32 {t4}, {t2}, 1, 1")
    a(f"v_and_b32 {t5}, 1, {t1}")
    a(f"v_lshl_add_u32 {t4}, {t5}, 1, {t4}")
    a(f"v_xor_b32 {t4}, s{s_w}, {t4}")
    a(f"v_lshl_add_u32 {t3}, {t4}, 5, {t3}")
    a(f"v_and_b32 {t4}, 3, {t0}")
    a(f"v_lshl_add_u32 v{v_rA}, {t4}, 3, {t3}")
    a(f"v_lshlrev_b32 {t3}, 8, {t0}")
    a(f"v_add_u32 {t3}, {OB}, {t3}")
    for s in range(4):
        a(f"v_add_u32 {t4}, {4*s}, {t1}")
        a(f"v_xor_b32 {t4}, {t4}, {t0}")
        a(f"v_lshl_add_u32 v{v_rB[s]}, {t4}, 4, {t3}")
    a(f"s_mov_b32 s{s_rd}, 0")
    for r in range(20):
        a(f"v_mov_b32 v{ACC+r}, 0")
    a("s_waitcnt lgkmcnt(0)")
    srd(a, SWS, 26, WS_SIZE)
    srd(a, SOUT, 24, 5242880)
    a(f"s_lshl_b32 s{s_t0}, s{s_mt}, 6")
    a(f"s_lshl_b32 s{s_t1}, s{s_w}, 4")
    a(f"s_add_u32 s{s_t0}, s{s_t0}, s{s_t1}")
    a(f"v_and_b32 {t0}, 15, {L}")
    a(f"v_add_u32 {t0}, s{s_t0}, {t0}")
    v_t, v_d = 30, 31
    a(f"v_mov_b32 v{v_t}, {t0}")
    a(f"s_mul_i32 s{s_t1}, s{s_nt}, 80")
    a(f"v_lshrrev_b32 {t1}, 4, {L}")
    a(f"v_lshlrev_b32 {t1}, 2, {t1}")
    a(f"v_add_u32 v{v_d}, s{s_t1}, {t1}")
    a(f"v_mul_u32_u24 {t2}, 1280, {t0}")
    a(f"v_lshl_add_u32 {t2}, v{v_d}, 1, {t2}")
    a(f"v_lshlrev_b32 {t3}, 1, v{v_d}")
    for jt in range(5):
        a(f"global_load_dwordx2 v[{vxr[2*jt]}:{vxr[2*jt+1]}], {t2}, s[16:17] offset:{32*jt}")
        a(f"global_load_dwordx2 v[{vds[2*jt]}:{vds[2*jt+1]}], {t3}, s[22:23] offset:{32*jt}")
    a(f"v_lshlrev_b32 {t4}, 2, {t0}")
    a(f"v_add_u32 {t4}, {WS_G:#x}, {t4}")
    a(f"buffer_load_dword v{v_g}, {t4}, s[{SWS}:{SWS+3}], 0 offen")

    def reads(q, half):
        g = []
        for s2 in range(2):
            s = half * 2 + s2
            b = fa(q, s2)
            for h in range(2):
                g.append([f"ds_read_b64_tr_b16 a[{b+2*h}:{b+2*h+1}], v{v_rA} offset:{s*4096 + h*512}"])
            for n in range(5):
                b = fb(q, s2, n)
                g.append([f"ds_read_b128 a[{b}:{b+3}], v{v_rB[s]} offset:{n*4096}"])
        return g

    def mfmas(q):
        m = []
        for s2 in range(2):
            for n in range(5):
                A = fa(q, s2)
                B = fb(q, s2, n)
                m.append(f"v_mfma_f32_16x16x32_bf16 {acc(n)}, a[{B}:{B+3}], a[{A}:{A+3}], {acc(n)}")
        return m

    def addr_update():
        g = [[f"s_add_u32 s{s_t1}, s{s_rd}, {BUF}",
              f"s_cmp_ge_u32 s{s_t1}, {NBUF*BUF}",
              f"s_cselect_b32 s{s_t1}, 0, s{s_t1}",
              f"s_sub_u32 s{s_t2}, s{s_t1}, s{s_rd}",
              f"s_mov_b32 s{s_rd}, s{s_t1}"]]
        for r in [v_rA] + v_rB:
            g.append([f"v_add_u32 v{r}, s{s_t2}, v{r}"])
        return g

    a("s_barrier")
    a.stamp(1)
    emit(a, reads(0, 0))

    def body(last):
        a("s_waitcnt lgkmcnt(0)")
        interleave(a, mfmas(0), reads(1, 1))
        if not last:
            a("s_waitcnt lgkmcnt(0)")
            a("s_barrier")
            interleave(a, mfmas(1), addr_update() + reads(0, 0))
        else:
            a("s_waitcnt lgkmcnt(0)")
            interleave(a, mfmas(1), [])

    a(f"s_mov_b32 s{s_c}, 0")
    a.label("k2_loop")
    body(False)
    a(f"s_add_u32 s{s_c}, s{s_c}, 1")
    a(f"s_cmp_eq_u32 s{s_c}, 10")
    a("s_cbranch_scc0 k2_nosw")
    a.nop(10)
    for r in range(20):
        a(f"v_mov_b32 v{ACA+r}, v{ACC+r}")
    for r in range(20):
        a(f"v_mov_b32 v{ACC+r}, 0")
    a("s_nop 1")
    a.label("k2_nosw")
    a(f"s_cmp_lt_u32 s{s_c}, 21")
    a("s_cbranch_scc1 k2_loop")
    body(True)
    a.nop(10)
    a.stamp(2)
    g = f"v{v_g}"
    omg = "v32"
    a("s_waitcnt vmcnt(0)")
    a(f"v_sub_f32 {omg}, 1.0, {g}")
    a(f"v_cvt_pk_bf16_f32 {omg}, {omg}, {omg}")
    a(f"v_lshlrev_b32 {omg}, 16, {omg}")
    a(f"v_mul_u32_u24 {t0}, 2560, v{v_t}")
    a(f"v_lshl_add_u32 {t0}, v{v_d}, 2, {t0}")
    u = [f"v{x}" for x in range(34, 46)]
    for jt in range(5):
        for pr in range(2):
            xr = f"v{vxr[2*jt+pr]}"
            dr = f"v{vds[2*jt+pr]}"
            a(f"v_lshlrev_b32 {u[0]}, 16, {xr}")
            a(f"v_and_b32 {u[1]}, 0xffff0000, {xr}")
            a(f"v_lshlrev_b32 {u[2]}, 16, {dr}")
            a(f"v_and_b32 {u[3]}, 0xffff0000, {dr}")
            a(f"v_mul_f32 {u[0]}, {u[0]}, {u[2]}")
            a(f"v_mul_f32 {u[1]}, {u[1]}, {u[3]}")
            a(f"v_cvt_pk_bf16_f32 {u[0]}, {u[0]}, {u[1]}")
            a(f"v_lshlrev_b32 {u[1]}, 16, {u[0]}")
            a(f"v_and_b32 {u[0]}, 0xffff0000, {u[0]}")
            a0 = f"v{ACA+4*jt+2*pr}"
            a1 = f"v{ACA+4*jt+2*pr+1}"
            b0 = f"v{ACC+4*jt+2*pr}"
            b1 = f"v{ACC+4*jt+2*pr+1}"
            a(f"v_add_f32 {a0}, {a0}, {u[1]}")
            a(f"v_add_f32 {a1}, {a1}, {u[0]}")
            a(f"v_cvt_pk_bf16_f32 {u[2]}, {b0}, {b1}")
            a(f"v_lshlrev_b32 {u[3]}, 16, {u[2]}")
            a(f"v_and_b32 {u[2]}, 0xffff0000, {u[2]}")
            a(f"v_mul_f32 {u[3]}, {omg}, {u[3]}")
            a(f"v_mul_f32 {u[2]}, {omg}, {u[2]}")
            a(f"v_cvt_pk_bf16_f32 {u[2]}, {u[3]}, {u[2]}")
            a(f"v_lshlrev_b32 {u[3]}, 16, {u[2]}")
            a(f"v_and_b32 {u[2]}, 0xffff0000, {u[2]}")
            a(f"v_mul_f32 {a0}, {g}, {a0}")
            a(f"v_mul_f32 {a1}, {g}, {a1}")
            a(f"v_add_f32 {a0}, {a0}, {u[3]}")
            a(f"v_add_f32 {a1}, {a1}, {u[2]}")
        a(f"buffer_store_dwordx4 v[{ACA+4*jt}:{ACA+4*jt+3}], {t0}, s[{SOUT}:{SOUT+3}], 0 offen offset:{64*jt}")
    a.stamp(3)
    a.stamp_flush(SWS, 0xF40000, 4, 24, 25, s_w)
    a.label("k2_end")
    a("s_endpgm")
    return dict(lds=LDS2, nv=NV, na=96)


def generate(opt):
    a1 = Asm(); a1.instr = bool(opt.get("instr", 0))
    i1 = gen_k1(a1, opt)
    a2 = Asm(); a2.instr = bool(opt.get("instr", 0))
    i2 = gen_k2(a2, opt)
    for aa in (a1, a2):
        if opt.get("noload", 0):
            aa.lines = [l for l in aa.lines if not (" lds" in l and "buffer_load" in l)]
        if opt.get("nocomp", 0):
            aa.lines = [l for l in aa.lines if not ("v_mfma" in l or ("ds_read" in l and " a[" in l))]
    out = HEADER
    out += f"; @launch kernel=k1_kernel grid=(256,1,1) block=(512,1,1) lds={i1['lds']}\n"
    out += f"; @launch kernel=k2_kernel grid=(256,1,1) block=(512,1,1) lds={i2['lds']}\n"
    out += '.amdgcn_target "amdgcn-amd-amdhsa--gfx950"\n.text\n'
    for nm, aa in (("k1_kernel", a1), ("k2_kernel", a2)):
        out += f".globl {nm}\n.p2align 8\n.type {nm},@function\n"
        out += aa.text()
    out += '.section .rodata,"a"\n'
    for nm, info in (("k1_kernel", i1), ("k2_kernel", i2)):
        acc_off = (info["nv"] + 3) // 4 * 4
        out += f""".p2align 6
.amdhsa_kernel {nm}
  .amdhsa_next_free_vgpr {acc_off + info['na']}
  .amdhsa_next_free_sgpr 102
  .amdhsa_accum_offset {acc_off}
  .amdhsa_group_segment_fixed_size 0
  .amdhsa_kernarg_size 136
  .amdhsa_user_sgpr_count 2
  .amdhsa_user_sgpr_kernarg_segment_ptr 1
  .amdhsa_system_sgpr_workgroup_id_x 1
.end_amdhsa_kernel
"""
    return out


if __name__ == "__main__":
    opt = {}
    outp = "cdna_kernels/" + NAME + ".s"
    for arg in sys.argv[1:]:
        if arg.startswith("-o="):
            outp = arg[3:]
        else:
            k, v = arg.split("=")
            opt[k] = int(v)
    open(outp, "w").write(generate(opt))
    print("wrote", outp)
```

```python
import sys
from gen import Asm, interleave, srd, DPP_SWAP, NAME, WS_AT, WS_G, WS_S, WS_W2T, WS_SIZE, LOG2E, LN2, INV2PI, HEADER
from gen2 import emit, mish_pair

WS_D = 0xB40000
WS_F = 0xB50000
KN = NAME + "_kernel"


def front(a, main, others, per):
    if per == 0:
        return interleave(a, main, others)
    oi = 0
    for ins in main:
        a(ins)
        for _ in range(per):
            if oi < len(others):
                for l in others[oi]:
                    a(l)
                oi += 1
    while oi < len(others):
        for l in others[oi]:
            a(l)
        oi += 1


def gen(a, opt):
    FP1 = opt.get("fp1", 2)
    FP2 = opt.get("fp2", 2)
    MISH_EXACT = opt.get("mish_exact", 0)
    BUF = 38912
    OA, OBU, OW1 = 0, 16384, 26624
    L_W2 = 3 * BUF + 2048
    L_E = 148 * 1024
    L_T = L_E + 5120
    L_F = L_T + 1280
    LDS = 160 * 1024
    BUF2 = 36864
    OA2, OB2 = 0, 16384
    NBUF = opt.get("k2_nbuf", 4)

    SX, SB, SW1, SWS, SDBG, SW2 = 40, 44, 48, 52, 56, 60
    SOUT = 40
    s_m, s_j, s_w = 64, 65, 66
    s_dA, s_dB, s_dW = 67, 68, 69
    s_kx, s_kw = 70, 71
    s_c = 72
    s_fill = 73
    s_rd = 74
    s_wv = 75
    s_t0, s_t1, s_t2, s_t3 = 76, 77, 78, 79
    s_ci = 80
    s_to = 81
    s_mt, s_nt = 12, 13
    s_ra, s_rb0 = 14, 15
    L = "v1"
    ACC = 64
    NV = 152
    t0, t1, t2, t3, t4, t5 = [f"v{x}" for x in range(24, 30)]

    def acc(n, s):
        b = ACC + n * 8 + s * 4
        return f"v[{b}:{b+3}]"

    def fa(q, s):
        return q * 52 + s * 4

    def fb(q, n):
        return q * 52 + 8 + n * 4

    a.label(KN)
    a("s_cmp_ge_u32 s2, 256")
    a("s_cbranch_scc1 k_end")
    a.stamp(0)
    a("s_load_dwordx8 s[16:23], s[0:1], 0")
    a("s_load_dwordx2 s[24:25], s[0:1], 32")
    a("s_load_dwordx4 s[4:7], s[0:1], 40")
    a("s_load_dwordx2 s[26:27], s[0:1], 56")
    a("s_load_dwordx2 s[8:9], s[0:1], 64")
    a("s_load_dwordx8 s[28:35], s[0:1], 80")
    a("s_load_dwordx2 s[10:11], s[0:1], 112")
    a("s_load_dwordx4 s[36:39], s[0:1], 120")
    a("v_lshrrev_b32 v2, 6, v0")
    a(f"v_and_b32 v1, 63, v0")
    a("s_nop 0")
    a(f"v_readfirstlane_b32 s{s_wv}, v2")
    MA = opt.get("k1_ma", 8)
    NB = 32 // MA
    XM = 16 // MA
    a(f"s_and_b32 s{s_t0}, s2, 7")
    a(f"s_lshr_b32 s{s_t1}, s2, 3")
    a(f"s_and_b32 s{s_t2}, s{s_t0}, {XM-1}")
    a(f"s_lshr_b32 s{s_t3}, s{s_t0}, {XM.bit_length()-1}")
    a(f"s_mul_i32 s{s_m}, s{s_t2}, {MA}")
    a(f"s_and_b32 s{s_t2}, s{s_t1}, {MA-1}")
    a(f"s_add_u32 s{s_m}, s{s_m}, s{s_t2}")
    a(f"s_mul_i32 s{s_j}, s{s_t3}, {NB}")
    a(f"s_lshr_b32 s{s_t2}, s{s_t1}, {MA.bit_length()-1}")
    a(f"s_add_u32 s{s_j}, s{s_j}, s{s_t2}")
    MA2 = opt.get("k2_ma", 4)
    NB2 = 32 // MA2
    XM2 = 32 // MA2
    a(f"s_and_b32 s{s_t2}, s{s_t0}, {XM2-1}")
    a(f"s_lshr_b32 s{s_t3}, s{s_t0}, {XM2.bit_length()-1}")
    a(f"s_mul_i32 s{s_mt}, s{s_t2}, {MA2}")
    a(f"s_and_b32 s{s_t2}, s{s_t1}, {MA2-1}")
    a(f"s_add_u32 s{s_mt}, s{s_mt}, s{s_t2}")
    a(f"s_mul_i32 s{s_nt}, s{s_t3}, {NB2}")
    a(f"s_lshr_b32 s{s_t2}, s{s_t1}, {MA2.bit_length()-1}")
    a(f"s_add_u32 s{s_nt}, s{s_nt}, s{s_t2}")
    a(f"s_and_b32 s{s_w}, s{s_wv}, 3")
    a(f"s_cmp_ge_u32 s{s_wv}, 4")
    a("s_cbranch_scc0 k_compute")

    v_oA = [2, 3, 4, 5]
    v_oB = [6, 7, 8]
    v_oW = [9, 10, 11]
    if opt.get("lprio", 3):
        a(f"s_setprio {opt.get('lprio', 3)}")
    a(f"s_lshl_b32 s{s_t0}, s{s_m}, 7")
    a(f"s_lshl_b32 s{s_t1}, s{s_w}, 5")
    a(f"s_add_u32 s{s_t0}, s{s_t0}, s{s_t1}")
    a(f"v_lshrrev_b32 {t0}, 3, {L}")
    a(f"v_add_u32 {t0}, s{s_t0}, {t0}")
    a(f"v_mul_u32_u24 {t0}, 1280, {t0}")
    a(f"v_bfe_u32 {t1}, {L}, 4, 1")
    a(f"v_and_b32 {t2}, 7, {L}")
    a(f"v_xor_b32 {t1}, {t1}, {t2}")
    for i in range(4):
        a(f"v_xor_b32 {t2}, {i<<1}, {t1}")
        a(f"v_lshlrev_b32 {t2}, 4, {t2}")
        a(f"v_add_u32 {t2}, {t0}, {t2}")
        a(f"v_add_u32 v{v_oA[i]}, {i*8*1280}, {t2}")
    a(f"s_mul_i32 s{s_t0}, s{s_w}, 20")
    a(f"s_lshr_b32 s{s_t1}, s{s_w}, 1")
    a(f"s_mul_i32 s{s_t2}, s{s_t1}, 40")
    a(f"s_mul_i32 s{s_t3}, s{s_j}, 40")
    a(f"s_sub_u32 s{s_t3}, s{s_t3}, s{s_t2}")
    for i in range(3):
        a(f"v_lshrrev_b32 {t0}, 3, {L}")
        a(f"v_add_u32 {t0}, s{s_t0}, {t0}")
        if i:
            a(f"v_add_u32 {t0}, {8*i}, {t0}")
        a(f"v_and_b32 {t1}, 6, {t0}")
        a(f"v_or_b32 {t1}, s{s_t1}, {t1}")
        a(f"v_and_b32 {t2}, 7, {L}")
        a(f"v_xor_b32 {t1}, {t1}, {t2}")
        a(f"v_lshlrev_b32 {t1}, 4, {t1}")
        a(f"v_add_u32 {t0}, s{s_t3}, {t0}")
        a(f"v_mul_u32_u24 {t0}, 1280, {t0}")
        a(f"v_add_u32 v{v_oB[i]}, {t0}, {t1}")
    a(f"s_lshl_b32 s{s_t0}, s{s_w}, 4")
    a(f"s_mul_i32 s{s_t1}, s{s_j}, 192")
    for i in range(3):
        a(f"v_add_u32 {t0}, {i*64}, {L}")
        a(f"v_mul_u32_u24 {t1}, 0x5556, {t0}")
        a(f"v_lshrrev_b32 {t1}, 18, {t1}")
        a(f"v_mul_u32_u24 {t2}, 12, {t1}")
        a(f"v_sub_u32 {t2}, {t0}, {t2}")
        a(f"v_lshrrev_b32 {t3}, 1, {t2}")
        a(f"v_bfe_u32 {t4}, {t1}, 3, 1")
        a(f"v_sub_u32 {t3}, {t3}, {t4}")
        a(f"v_add_u32 {t4}, 6, {t3}")
        a(f"v_cmp_gt_i32 vcc, 0, {t3}")
        a("s_nop 1")
        a(f"v_cndmask_b32 {t3}, {t3}, {t4}, vcc")
        a(f"v_and_b32 {t2}, 1, {t2}")
        a(f"v_lshl_add_u32 {t3}, {t3}, 1, {t2}")
        a(f"v_lshlrev_b32 {t3}, 4, {t3}")
        a(f"v_add_u32 {t1}, s{s_t0}, {t1}")
        a(f"v_mul_u32_u24 {t1}, 3072, {t1}")
        a(f"v_add_u32 {t1}, s{s_t1}, {t1}")
        a(f"v_add_u32 v{v_oW[i]}, {t1}, {t3}")
    a(f"s_lshl_b32 s{s_dA}, s{s_w}, 12")
    a(f"s_mul_i32 s{s_dB}, s{s_w}, 2560")
    a(f"s_add_u32 s{s_dB}, s{s_dB}, {OBU}")
    a(f"s_mul_i32 s{s_dW}, s{s_w}, 3072")
    a(f"s_add_u32 s{s_dW}, s{s_dW}, {OW1}")
    RM1 = opt.get("k1_rmod", 5)
    a(f"s_mul_i32 s{s_t0}, s{s_m}, {opt.get('k1_rm', 1)}")
    a(f"s_mul_i32 s{s_t1}, s{s_j}, {opt.get('k1_rj', 3)}")
    a(f"s_add_u32 s{s_t0}, s{s_t0}, s{s_t1}")
    a(f"s_mul_i32 s{s_t1}, s{s_t0}, {65536 // RM1 + 1}")
    a(f"s_lshr_b32 s{s_t1}, s{s_t1}, 16")
    a(f"s_mul_i32 s{s_t1}, s{s_t1}, {RM1}")
    a(f"s_sub_u32 s{s_t0}, s{s_t0}, s{s_t1}")
    a(f"s_lshl_b32 s{s_kx}, s{s_t0}, 7")
    a(f"s_mul_i32 s{s_kw}, s{s_t0}, {64*3072}")
    a(f"s_mov_b32 s{s_fill}, 0")
    a("s_waitcnt lgkmcnt(0)")
    srd(a, SX, 16, 2621440)
    a(f"s_cmp_ge_u32 s{s_w}, 2")
    a(f"s_cselect_b32 s{s_t0}, s24, s22")
    a(f"s_cselect_b32 s{s_t1}, s25, s23")
    srd(a, SB, s_t0, 819200)
    srd(a, SW1, 28, 1966080)

    s_dA2, s_dB2 = 60, 61
    def all_cleared(tag):
        a(f"v_lshlrev_b32 {t1}, 2, {L}")
        a(f"s_mov_b32 s{s_to}, 0")
        a.label(f"k_ac_{tag}")
        a(f"buffer_load_dword {t0}, {t1}, s[{SDBG}:{SDBG+3}], 0 offen sc1")
        a("s_waitcnt vmcnt(0)")
        a(f"v_cmp_eq_u32 vcc, 0x01010101, {t0}")
        a("s_cmp_eq_u64 vcc, -1")
        a(f"s_cbranch_scc1 k_acd_{tag}")
        a("s_sleep 8")
        a(f"s_add_u32 s{s_to}, s{s_to}, 1")
        a(f"s_cmp_lt_u32 s{s_to}, 0x80000")
        a(f"s_cbranch_scc1 k_ac_{tag}")
        a.label(f"k_acd_{tag}")

    v2A = [104, 105, 106, 107]
    v2B = [108, 109, 110, 111, 112]
    v2B2 = [144, 145, 146, 147, 148]
    v2X = [113, 151, 22, 23, 33]
    RM2 = opt.get("k2_rmod", 3)

    def p2_setup(tag):
        a(f"s_lshl_b32 s{s_t0}, s{s_w}, 5")
        a(f"v_lshrrev_b32 {t0}, 3, {L}")
        a(f"v_add_u32 {t0}, s{s_t0}, {t0}")
        a(f"v_lshlrev_b32 {t0}, 12, {t0}")
        a(f"s_lshl_b32 s{s_t1}, s{s_mt}, 7")
        a(f"v_add_u32 {t0}, s{s_t1}, {t0}")
        a(f"v_bfe_u32 {t1}, {L}, 1, 2")
        a(f"v_bfe_u32 {t2}, {L}, 4, 1")
        a(f"v_xor_b32 {t1}, {t1}, {t2}")
        a(f"v_and_b32 {t2}, 1, {L}")
        for i in range(4):
            a(f"v_xor_b32 {t3}, {(i&1)<<1}, {t1}")
            a(f"v_lshl_add_u32 {t3}, {t3}, 1, {t2}")
            a(f"v_lshl_add_u32 {t3}, {t3}, 4, {t0}")
            a(f"v_add_u32 v{v2A[i]}, {i*8*4096}, {t3}")
        a(f"s_mul_i32 s{s_t0}, s{s_w}, 20")
        a(f"s_mul_i32 s{s_t1}, s{s_nt}, 80")
        for i in range(5):
            a(f"v_lshrrev_b32 {t0}, 4, {L}")
            a(f"v_add_u32 {t0}, s{s_t0}, {t0}")
            if i:
                a(f"v_add_u32 {t0}, {4*i}, {t0}")
            a(f"v_xor_b32 {t1}, {t0}, {L}")
            a(f"v_and_b32 {t1}, 15, {t1}")
            a(f"v_lshlrev_b32 {t1}, 4, {t1}")
            a(f"v_add_u32 {t0}, s{s_t1}, {t0}")
            a(f"v_mul_u32_u24 {t2}, 1280, {t0}")
            a(f"v_add_u32 v{v2B[i]}, {t2}, {t1}")
            a(f"v_mul_u32_u24 {t2}, 3072, {t0}")
            a(f"v_add_u32 {t2}, {t2}, {t1}")
            a(f"v_add_u32 v{v2B2[i]}, {WS_W2T:#x}, {t2}")
        a(f"s_lshl_b32 s{s_dA2}, s{s_w}, 12")
        a(f"s_mul_i32 s{s_dB2}, s{s_w}, 5120")
        a(f"s_add_u32 s{s_dB2}, s{s_dB2}, {OB2}")
        a(f"s_mul_i32 s{s_t0}, s{s_mt}, {opt.get('k2_rm', 2)}")
        a(f"s_mul_i32 s{s_t1}, s{s_nt}, {opt.get('k2_rn', 1)}")
        a(f"s_add_u32 s{s_t0}, s{s_t0}, s{s_t1}")
        a(f"s_mul_i32 s{s_t1}, s{s_t0}, {65536 // RM2 + 1}")
        a(f"s_lshr_b32 s{s_t1}, s{s_t1}, 16")
        a(f"s_mul_i32 s{s_t1}, s{s_t1}, {RM2}")
        a(f"s_sub_u32 s{s_ra}, s{s_t0}, s{s_t1}")
        a(f"s_mov_b32 s{s_rb0}, s{s_ra}")

        a(f"s_mul_i32 s{s_t1}, s{s_nt}, 80")
        for i in range(5):
            a(f"v_lshrrev_b32 {t0}, 4, {L}")
            if i:
                a(f"v_add_u32 {t0}, {4*i}, {t0}")
            a(f"v_xor_b32 {t1}, {t0}, {L}")
            a(f"v_and_b32 {t1}, 15, {t1}")
            a(f"v_lshlrev_b32 {t1}, 4, {t1}")
            a(f"v_add_u32 {t0}, s{s_t1}, {t0}")
            a(f"v_mul_u32_u24 {t2}, 3072, {t0}")
            a(f"v_add_u32 {t2}, {t2}, {t1}")
            a(f"v_add_u32 v{v2X[i]}, {WS_W2T:#x}, {t2}")
        a(f"s_lshr_b32 s{s_t0}, s{s_mt}, 1")
        a(f"s_lshl_b32 s{s_t0}, s{s_t0}, 11")
        a(f"s_add_u32 s{s_t0}, s{s_t0}, {WS_D:#x}")
        a(f"v_lshrrev_b32 v149, 2, {L}")
        a(f"v_lshlrev_b32 v149, 7, v149")
        a(f"v_and_b32 v150, 3, {L}")
        a(f"v_lshl_add_u32 v149, v150, 2, v149")
        a(f"v_add_u32 v149, s{s_t0}, v149")
        a(f"v_add_u32 v150, 16, v149")

    def poll_tags(tag, vaddr):
        a(f"s_mov_b32 s{s_to}, 0")
        a.label(f"k2_poll_{tag}")
        a(f"buffer_load_dword {t2}, {vaddr}, s[{SWS}:{SWS+3}], 0 offen sc1")
        a("s_waitcnt vmcnt(0)")
        a(f"v_cmp_eq_u32 vcc, 1, {t2}")
        a("s_cmp_eq_u64 vcc, -1")
        a(f"s_cbranch_scc1 k2_polld_{tag}")
        a(f"s_sleep {opt.get('psleep', 12)}")
        a(f"s_add_u32 s{s_to}, s{s_to}, 1")
        a(f"s_cmp_lt_u32 s{s_to}, 0x40000")
        a(f"s_cbranch_scc1 k2_poll_{tag}")
        a.label(f"k2_polld_{tag}")

    def gate_fn():
        a(f"s_cmp_ge_u32 s{s_w}, 2")
        a("s_cbranch_scc0 k1_g_skip")
        accg = "v34"
        u = [f"v{x}" for x in range(35, 43)]
        a(f"v_mov_b32 {accg}, 0")
        for i in range(20):
            xr, wr = f"v{gx[i]}", f"v{gw[i]}"
            a(f"v_lshlrev_b32 {u[0]}, 16, {xr}")
            a(f"v_and_b32 {u[1]}, 0xffff0000, {xr}")
            a(f"v_lshlrev_b32 {u[2]}, 16, {wr}")
            a(f"v_and_b32 {u[3]}, 0xffff0000, {wr}")
            a(f"v_mul_f32 {u[0]}, {u[0]}, {u[2]}")
            a(f"v_mul_f32 {u[1]}, {u[1]}, {u[3]}")
            a(f"v_cvt_pk_bf16_f32 {u[0]}, {u[0]}, {u[1]}")
            a(f"v_lshlrev_b32 {u[1]}, 16, {u[0]}")
            a(f"v_and_b32 {u[0]}, 0xffff0000, {u[0]}")
            a(f"v_add_f32 {accg}, {accg}, {u[1]}")
            a(f"v_add_f32 {accg}, {accg}, {u[0]}")
        for sh in (8, 4, 2, 1):
            a("s_nop 1")
            a(f"v_add_f32_dpp {accg}, {accg}, {accg} row_ror:{sh} row_mask:0xf bank_mask:0xf")
        a("s_nop 0")
        a(f"v_cvt_pk_bf16_f32 {accg}, {accg}, {accg}")
        a(f"v_lshlrev_b32 {accg}, 16, {accg}")
        a(f"v_mul_f32 {accg}, 0xbfb8aa3b, {accg}")
        a(f"v_exp_f32 {accg}, {accg}")
        a("s_nop 0")
        a(f"v_add_f32 {accg}, 1.0, {accg}")
        a(f"v_rcp_f32 {accg}, {accg}")
        a("s_nop 0")
        a(f"v_cvt_pk_bf16_f32 {accg}, {accg}, {accg}")
        a(f"v_lshlrev_b32 {accg}, 16, {accg}")
        a(f"v_subrev_u32 {u[0]}, 384, v0")
        a(f"v_lshrrev_b32 {u[0]}, 4, {u[0]}")
        a(f"s_lshl_b32 s{s_t0}, s{s_m}, 7")
        a(f"s_lshl_b32 s{s_t1}, s{s_j}, 3")
        a(f"s_add_u32 s{s_t0}, s{s_t0}, s{s_t1}")
        a(f"v_add_u32 {u[0]}, s{s_t0}, {u[0]}")
        a(f"v_lshlrev_b32 {u[0]}, 2, {u[0]}")
        a(f"v_add_u32 {u[0]}, {WS_G:#x}, {u[0]}")
        a(f"v_and_b32 {u[1]}, 15, {L}")
        a(f"v_cmp_eq_u32 vcc, 0, {u[1]}")
        a(f"s_and_saveexec_b64 s[{s_t2}:{s_t2+1}], vcc")
        a(f"buffer_store_dword {accg}, {u[0]}, s[{SWS}:{SWS+3}], 0 offen sc1")
        a(f"s_mov_b64 exec, s[{s_t2}:{s_t2+1}]")
        a.label("k1_g_skip")


    pc = [30, 31, 32]
    def const_fn():
        a(f"s_cmp_eq_u32 s{s_w}, 0")
        a("s_cbranch_scc0 k1_c_notw0")
        lre, lim, ldt = [f"v{x}" for x in pc]
        c = [f"v{x}" for x in range(34, 54)]
        a(f"v_lshlrev_b32 {lre}, 16, {lre}")
        a(f"v_lshlrev_b32 {lim}, 16, {lim}")
        a(f"v_lshlrev_b32 {ldt}, 16, {ldt}")
        a(f"s_mov_b32 s{s_t0}, {LOG2E:#x}")
        a(f"s_mov_b32 s{s_t1}, {INV2PI:#x}")
        a(f"v_mul_f32 {ldt}, s{s_t0}, {ldt}")
        a(f"v_exp_f32 {ldt}, {ldt}")
        a("s_nop 0")
        a(f"v_cvt_pk_bf16_f32 {ldt}, {ldt}, {ldt}")
        a(f"v_lshlrev_b32 {ldt}, 16, {ldt}")
        a(f"v_mul_f32 {c[0]}, {ldt}, {lre}")
        a(f"v_mul_f32 {c[1]}, {ldt}, {lim}")
        a(f"v_mul_f32 {c[0]}, s{s_t0}, {c[0]}")
        a(f"v_exp_f32 {c[0]}, {c[0]}")
        a(f"v_mul_f32 {c[1]}, s{s_t1}, {c[1]}")
        a(f"v_fract_f32 {c[1]}, {c[1]}")
        a(f"v_cos_f32 {c[2]}, {c[1]}")
        a(f"v_sin_f32 {c[3]}, {c[1]}")
        a("s_nop 0")
        a(f"v_mul_f32 {c[4]}, {c[0]}, {c[2]}")
        a(f"v_mul_f32 {c[5]}, {c[0]}, {c[3]}")
        a(f"v_mul_f32 {c[12]}, {lre}, {lre}")
        a(f"v_fmac_f32 {c[12]}, {lim}, {lim}")
        a(f"v_rcp_f32 {c[13]}, {c[12]}")
        a("s_nop 0")
        a(f"v_fma_f32 {c[14]}, -{c[12]}, {c[13]}, 1.0")
        a(f"v_fmac_f32 {c[13]}, {c[14]}, {c[13]}")
        a(f"v_add_f32 {c[14]}, -1.0, {c[4]}")
        a(f"v_mul_f32 {c[6]}, {c[14]}, {lre}")
        a(f"v_fmac_f32 {c[6]}, {c[5]}, {lim}")
        a(f"v_mul_f32 {c[6]}, {c[6]}, {c[13]}")
        a(f"v_mul_f32 {c[7]}, {c[5]}, {lre}")
        a(f"v_fma_f32 {c[7]}, -{c[14]}, {lim}, {c[7]}")
        a(f"v_mul_f32 {c[7]}, {c[7]}, {c[13]}")

        def csq(dr, di, sr, si):
            a(f"v_mul_f32 {c[15]}, {si}, {si}")
            a(f"v_fma_f32 {dr if dr != sr else c[16]}, {sr}, {sr}, -{c[15]}")
            a(f"v_mul_f32 {c[15]}, {sr}, {si}")
            a(f"v_add_f32 {di}, {c[15]}, {c[15]}")
            if dr == sr:
                a(f"v_mov_b32 {dr}, {c[16]}")
        csq(c[8], c[9], c[4], c[5])
        csq(c[8], c[9], c[8], c[9])
        csq(c[8], c[9], c[8], c[9])
        csq(c[10], c[11], c[8], c[9])
        csq(c[10], c[11], c[10], c[11])
        csq(c[10], c[11], c[10], c[11])
        csq(c[10], c[11], c[10], c[11])
        a(f"v_lshlrev_b32 {c[15]}, 5, {L}")
        a(f"v_add_u32 {c[15]}, {L_T}, {c[15]}")
        a(f"v_cmp_gt_u32 vcc, 40, {L}")
        a(f"s_and_saveexec_b64 s[{s_t2}:{s_t2+1}], vcc")
        a(f"ds_write_b128 {c[15]}, v[38:41]")
        a(f"ds_write_b128 {c[15]}, v[42:45] offset:16")
        a(f"s_mov_b64 exec, s[{s_t2}:{s_t2+1}]")
        a(f"v_mov_b32 {c[15]}, {L_F}")
        a(f"v_mov_b32 {c[16]}, 0")
        a(f"ds_write_b32 {c[15]}, {c[16]}")
        a(f"ds_write_b32 {c[15]}, {c[16]} offset:4")
        a.label("k1_c_notw0")


    def dma_chunk():
        for i in range(4):
            a(f"s_add_u32 s{s_t0}, s{s_dA}, s{s_fill}")
            a(f"s_add_u32 m0, s{s_t0}, {i*1024}")
            a("s_nop 0")
            a(f"buffer_load_dwordx4 v{v_oA[i]}, s[{SX}:{SX+3}], s{s_kx} offen lds")
        for i in range(3):
            a(f"s_add_u32 s{s_t0}, s{s_dW}, s{s_fill}")
            a(f"s_add_u32 m0, s{s_t0}, {i*1024}")
            a("s_nop 0")
            a(f"buffer_load_dwordx4 v{v_oW[i]}, s[{SW1}:{SW1+3}], s{s_kw} offen lds")
        for i in range(3):
            a(f"s_add_u32 s{s_t0}, s{s_dB}, s{s_fill}")
            a(f"s_add_u32 m0, s{s_t0}, {i*1024}")
            if i == 2:
                a("s_mov_b64 exec, 0xffffffff")
                a(f"buffer_load_dwordx4 v{v_oB[i]}, s[{SB}:{SB+3}], s{s_kx} offen lds")
                a("s_mov_b64 exec, -1")
            else:
                a("s_nop 0")
                a(f"buffer_load_dwordx4 v{v_oB[i]}, s[{SB}:{SB+3}], s{s_kx} offen lds")
        a(f"s_add_u32 s{s_kx}, s{s_kx}, 128")
        a(f"s_add_u32 s{s_kw}, s{s_kw}, {64*3072}")
        a(f"s_cmp_ge_u32 s{s_kx}, 1280")
        a(f"s_cselect_b32 s{s_kx}, 0, s{s_kx}")
        a(f"s_cselect_b32 s{s_kw}, 0, s{s_kw}")
        a(f"s_add_u32 s{s_fill}, s{s_fill}, {BUF}")
        a(f"s_cmp_ge_u32 s{s_fill}, {3*BUF}")
        a(f"s_cselect_b32 s{s_fill}, 0, s{s_fill}")

    dma_chunk()
    srd(a, SWS, 38, WS_SIZE)
    srd(a, SDBG, 36, 256)
    pc = [30, 31, 32]
    gx = list(range(64, 84))
    gw = list(range(84, 104))
    a(f"s_cmp_eq_u32 s{s_w}, 0")
    a("s_cbranch_scc0 k1_p_notw0")
    a(f"s_mul_i32 s{s_t0}, s{s_j}, 40")
    a(f"v_min_u32 {t0}, 39, {L}")
    a(f"v_add_u32 {t0}, s{s_t0}, {t0}")
    a(f"v_lshlrev_b32 {t0}, 1, {t0}")
    a(f"global_load_ushort v{pc[0]}, {t0}, s[18:19]")
    a(f"global_load_ushort v{pc[1]}, {t0}, s[20:21]")
    a(f"global_load_ushort v{pc[2]}, {t0}, s[26:27]")
    a.label("k1_p_notw0")
    a(f"s_cmp_ge_u32 s{s_w}, 2")
    a("s_cbranch_scc0 k1_p_notgate")
    a(f"v_subrev_u32 {t0}, 384, v0")
    a(f"v_lshrrev_b32 {t1}, 4, {t0}")
    a(f"s_lshl_b32 s{s_t0}, s{s_m}, 7")
    a(f"s_lshl_b32 s{s_t1}, s{s_j}, 3")
    a(f"s_add_u32 s{s_t0}, s{s_t0}, s{s_t1}")
    a(f"v_add_u32 {t1}, s{s_t0}, {t1}")
    a(f"v_mul_u32_u24 {t1}, 1280, {t1}")
    a(f"v_and_b32 {t0}, 15, {t0}")
    a(f"v_lshlrev_b32 {t0}, 4, {t0}")
    a(f"v_add_u32 {t1}, {t1}, {t0}")
    for i in range(5):
        a(f"global_load_dwordx4 v[{gx[4*i]}:{gx[4*i+3]}], {t1}, s[16:17] offset:{256*i}")
        a(f"global_load_dwordx4 v[{gw[4*i]}:{gw[4*i+3]}], {t0}, s[34:35] offset:{256*i}")
    a.label("k1_p_notgate")
    dma_chunk()
    a("s_waitcnt vmcnt(10)")
    a("s_barrier")
    dma_chunk()
    p2_setup("a")
    a(f"s_mov_b32 s{s_c}, 0")
    a.label("k1_lloop")
    a("s_waitcnt vmcnt(10)")
    a("s_barrier")
    dma_chunk()
    a(f"s_cmp_eq_u32 s{s_c}, 1")
    a("s_cbranch_scc0 k1_l_no4")
    const_fn()
    a.label("k1_l_no4")
    a(f"s_add_u32 s{s_c}, s{s_c}, 1")
    a(f"s_cmp_lt_u32 s{s_c}, 7")
    a("s_cbranch_scc1 k1_lloop")
    if opt.get("ctouch", 1):
        a(f"s_cmp_eq_u32 s{s_w}, 3")
        a("s_cbranch_scc0 k1_noct")
        a(f"s_lshr_b32 s{s_t0}, s2, 3")
        a(f"s_mul_i32 s{s_t0}, s{s_t0}, {200*128}")
        a(f"v_lshlrev_b32 {t0}, 7, {L}")
        a(f"v_add_u32 {t0}, s{s_t0}, {t0}")
        for base in (4, 6):
            for q in range(4):
                if q == 3:
                    a("s_mov_b64 exec, 0xff")
                a(f"global_load_dword v{34+q+base}, {t0}, s[{base}:{base+1}] offset:0" if q == 0 else
                  f"v_add_u32 {t1}, {q*64*128}, {t0}")
                if q:
                    a(f"global_load_dword v{34+q+base}, {t1}, s[{base}:{base+1}]")
                if q == 3:
                    a("s_mov_b64 exec, -1")
    a.label("k1_noct")
    a("s_waitcnt vmcnt(10) lgkmcnt(0)")
    a("s_barrier")
    a("s_waitcnt vmcnt(0)")
    a("s_barrier")

    a(f"s_cmp_eq_u32 s{s_w}, 0")
    a("s_cbranch_scc1 k1_chainwave")
    a("s_barrier")
    a("s_setprio 0")
    gate_fn()
    all_cleared("a")
    a(f"s_setprio {opt.get('lprio', 3)}")
    a("s_branch k2_lsetup")

    a.label("k1_chainwave")
    a("s_setprio 3")
    vcol = [2, 3]; vP = [4, 5]; vT = [6, 7]; a8 = [8, 9]; b8 = [10, 11]; a128 = [12, 13]; b128 = [14, 15]
    vCaddr = [16, 17]
    vE = [list(range(64, 80)), list(range(80, 96))]
    vG = [list(range(34, 64, 2)), list(range(114, 144, 2))]
    a(f"v_mov_b32 v{vcol[0]}, {L}")
    a(f"v_add_u32 v{vcol[1]}, 64, {L}")
    a(f"v_min_u32 v{vcol[1]}, 79, v{vcol[1]}")
    for q in range(2):
        a(f"v_lshrrev_b32 {t0}, 1, v{vcol[q]}")
        a(f"v_lshlrev_b32 {t0}, 5, {t0}")
        a(f"v_add_u32 {t0}, {L_T}, {t0}")
        a(f"ds_read_b128 v[{96+4*q}:{99+4*q}], {t0} offset:16")
        a(f"v_lshlrev_b32 v{vCaddr[q]}, 2, v{vcol[q]}")
        a(f"v_add_u32 v{vCaddr[q]}, {L_E}, v{vCaddr[q]}")
    a(f"v_and_b32 {t1}, 1, {L}")
    a(f"v_cmp_eq_u32 vcc, 1, {t1}")
    a("s_waitcnt lgkmcnt(0)")
    for q in range(2):
        b = 96 + 4 * q
        a(f"v_mov_b32 v{a8[q]}, v{b}")
        a(f"v_sub_f32 {t2}, 0, v{b+1}")
        a(f"v_cndmask_b32 v{b8[q]}, {t2}, v{b+1}, vcc")
        a(f"v_mov_b32 v{a128[q]}, v{b+2}")
        a(f"v_sub_f32 {t2}, 0, v{b+3}")
        a(f"v_cndmask_b32 v{b128[q]}, {t2}, v{b+3}, vcc")
    a("s_barrier")
    a.stamp(3)
    for G in range(16):
        for q in range(2):
            a(f"ds_read_b32 v{vE[q][G]}, v{vCaddr[q]} offset:{G*320}")
        if G == 6 or G == 13:
            a("s_waitcnt lgkmcnt(0)")
    a("s_waitcnt lgkmcnt(0)")
    for q in range(2):
        a(f"v_mov_b32 v{vP[q]}, v{vE[q][0]}")
    a("s_nop 0")

    def chain_step(aa, bb, src):
        for q in range(2):
            a(f"v_fma_f32 v{vT[q]}, v{aa[q]}, v{vP[q]}, v{src[q]}")
        for q in range(2):
            a(f"v_fmac_f32_dpp v{vT[q]}, v{vP[q]}, v{bb[q]} {DPP_SWAP}")
        for q in range(2):
            a(f"v_mov_b32 v{vP[q]}, v{vT[q]}")
    for G in range(1, 16):
        chain_step(a8, b8, [vE[0][G], vE[1][G]])
    a(f"s_lshl_b32 s{s_t0}, s{s_m}, 4")
    a(f"s_add_u32 s{s_t0}, s{s_t0}, s{s_j}")
    a(f"s_mul_i32 s{s_t0}, s{s_t0}, 640")
    a(f"s_add_u32 s{s_t0}, s{s_t0}, {WS_S:#x}")
    a(f"v_lshlrev_b32 {t0}, 3, {L}")
    a(f"v_mov_b32 v18, v{vP[0]}")
    a(f"v_mov_b32 v19, 1")
    a(f"v_mov_b32 v20, v{vP[1]}")
    a(f"v_mov_b32 v21, 1")
    a(f"buffer_store_dwordx2 v[18:19], {t0}, s[{SWS}:{SWS+3}], s{s_t0} offen sc1")
    a("s_mov_b64 exec, 0xffff")
    a(f"buffer_store_dwordx2 v[20:21], {t0}, s[{SWS}:{SWS+3}], s{s_t0} offen offset:512 sc1")
    a("s_mov_b64 exec, -1")
    a.stamp(4)
    all_cleared("b")
    for q in range(2):
        a(f"v_mov_b32 v{vP[q]}, 0")
    a(f"s_cmp_eq_u32 s{s_m}, 0")
    a("s_cbranch_scc1 k1_e5_chain2")
    a(f"v_lshlrev_b32 {t0}, 3, v{vcol[0]}")
    a(f"v_lshlrev_b32 {t1}, 3, v{vcol[1]}")
    a(f"s_mov_b32 s{s_to}, 0")
    a.label("k1_poll")
    a(f"s_mul_i32 s{s_t0}, s{s_j}, 640")
    a(f"s_add_u32 s{s_t0}, s{s_t0}, {WS_S:#x}")
    for mp in range(15):
        a(f"buffer_load_dwordx2 v[{vG[0][mp]}:{vG[0][mp]+1}], {t0}, s[{SWS}:{SWS+3}], s{s_t0} offen sc1")
        a(f"buffer_load_dwordx2 v[{vG[1][mp]}:{vG[1][mp]+1}], {t1}, s[{SWS}:{SWS+3}], s{s_t0} offen sc1")
        if mp < 14:
            a(f"s_add_u32 s{s_t0}, s{s_t0}, {16*640}")
            a(f"s_cmp_eq_u32 s{s_m}, {mp+1}")
            a("s_cbranch_scc1 k1_poll_w")
    a.label("k1_poll_w")
    a("s_waitcnt vmcnt(0)")
    a(f"v_mov_b32 {t2}, 1")
    for mp in range(15):
        a(f"v_and_b32 {t2}, {t2}, v{vG[0][mp]+1}")
        a(f"v_and_b32 {t2}, {t2}, v{vG[1][mp]+1}")
        if mp < 14:
            a(f"s_cmp_eq_u32 s{s_m}, {mp+1}")
            a("s_cbranch_scc1 k1_poll_c")
    a.label("k1_poll_c")
    a(f"v_cmp_eq_u32 vcc, 1, {t2}")
    a("s_cmp_eq_u64 vcc, -1")
    a("s_cbranch_scc1 k1_poll_done")
    a(f"s_add_u32 s{s_to}, s{s_to}, 1")
    a(f"s_cmp_lt_u32 s{s_to}, 0x40000")
    a("s_cbranch_scc1 k1_poll")
    a.label("k1_poll_done")
    a.stamp(5)
    for mp in range(15):
        chain_step(a128, b128, [vG[0][mp], vG[1][mp]])
        if mp < 14:
            a(f"s_cmp_eq_u32 s{s_m}, {mp+1}")
            a("s_cbranch_scc1 k1_e5_chain2")
    a.label("k1_e5_chain2")
    a("s_nop 1")
    for G in range(16):
        a(f"ds_write_b32 v{vCaddr[0]}, v{vP[0]} offset:{G*320}")
        a("s_mov_b64 exec, 0xffff")
        a(f"ds_write_b32 v{vCaddr[1]}, v{vP[1]} offset:{G*320}")
        a("s_mov_b64 exec, -1")
        if G < 15:
            chain_step(a8, b8, [vE[0][G], vE[1][G]])
    a("s_waitcnt lgkmcnt(0)")
    a(f"v_mov_b32 {t0}, {L_F}")
    a(f"v_mov_b32 {t1}, 1")
    a(f"ds_write_b32 {t0}, {t1}")
    a(f"s_setprio {opt.get('lprio', 3)}")
    a.stamp(6)

    a.label("k2_lsetup")
    srd(a, SB, 38, WS_SIZE)
    assert RM2 + NBUF <= 10
    uid = [0]

    def b_src_phase_a(idx_sgpr):
        a(f"s_cmp_ge_u32 s{idx_sgpr}, 5")
        a(f"s_cselect_b32 s{SB}, s6, s4")
        a(f"s_cselect_b32 s{s_t0}, s7, s5")
        a(f"s_cselect_b32 s{s_t1}, 5, 0")
        a(f"s_and_b32 s{SB+1}, s{s_t0}, 0xffff")
        a(f"s_sub_u32 s{s_t1}, s{idx_sgpr}, s{s_t1}")
        a(f"s_lshl_b32 s{s_kw}, s{s_t1}, 8")

    def dma2_b(fill, regs):
        for i in range(5):
            a(f"s_add_u32 m0, s{s_dB2}, {fill + i*1024}" if isinstance(fill, int) else f"s_add_u32 s{s_t0}, s{s_dB2}, s{s_fill}")
            if not isinstance(fill, int):
                a(f"s_add_u32 m0, s{s_t0}, {i*1024}")
            a("s_nop 0")
            a(f"buffer_load_dwordx4 v{regs[i]}, s[{SB}:{SB+3}], s{s_kw} offen sc1 lds")

    def dma2_a(fill):
        for i in range(4):
            a(f"s_add_u32 m0, s{s_dA2}, {fill + i*1024}" if isinstance(fill, int) else f"s_add_u32 s{s_t0}, s{s_dA2}, s{s_fill}")
            if not isinstance(fill, int):
                a(f"s_add_u32 m0, s{s_t0}, {i*1024}")
            a("s_nop 0")
            a(f"buffer_load_dwordx4 v{v2A[i]}, s[{SWS}:{SWS+3}], s{s_kx} offen sc1 lds")

    a(f"s_cmp_eq_u32 s{s_w}, 0")
    a("s_cbranch_scc1 k2_nobpre")
    if opt.get("bwait", 1):
        a(f"v_mov_b32 {t4}, {L_F}")
        a.label("k2_bspin")
        a(f"ds_read_b32 {t5}, {t4} offset:4")
        a("s_waitcnt lgkmcnt(0)")
        a(f"v_readfirstlane_b32 s{s_t0}, {t5}")
        a("s_nop 3")
        a(f"s_cmp_eq_u32 s{s_t0}, 4")
        a("s_cbranch_scc1 k2_bgo")
        a("s_sleep 4")
        a("s_branch k2_bspin")
        a.label("k2_bgo")
    a(f"v_min_u32 {t1}, 47, {L}")
    a(f"v_lshrrev_b32 {t3}, 1, {t1}")
    a(f"v_and_b32 {t1}, 1, {t1}")
    a(f"s_mul_i32 s{s_t0}, s{s_nt}, 80")
    a(f"s_lshr_b32 s{s_t1}, s{s_t0}, 6")
    a(f"s_add_u32 s{s_t0}, s{s_t0}, 79")
    a(f"s_lshr_b32 s{s_t0}, s{s_t0}, 6")
    a(f"s_sub_u32 s{s_t0}, s{s_t0}, s{s_t1}")
    a(f"v_mul_u32_u24 {t1}, s{s_t0}, {t1}")
    a(f"v_add_u32 {t1}, s{s_t1}, {t1}")
    a(f"v_mul_u32_u24 {t3}, 10, {t3}")
    a(f"v_add_u32 {t1}, {t1}, {t3}")
    a(f"v_lshlrev_b32 {t1}, 7, {t1}")
    a(f"v_add_u32 {t1}, {WS_F:#x}, {t1}")
    poll_tags("w2", t1)
    for cc_ in range(NBUF):
        a(f"s_add_u32 s{s_t3}, s{s_ra}, {cc_}")
        a(f"s_lshl_b32 s{s_kw}, s{s_t3}, 8")
        dma2_b(cc_ * BUF2, v2B2)
        a(f"s_cmp_eq_u32 s{s_w}, 1")
        a(f"s_cbranch_scc0 k2_nox_{cc_}")
        for i in range(5):
            a(f"s_mov_b32 m0, {OB2 + cc_*BUF2 + i*1024}")
            a("s_nop 0")
            a(f"buffer_load_dwordx4 v{v2X[i]}, s[{SB}:{SB+3}], s{s_kw} offen sc1 lds")
        a.label(f"k2_nox_{cc_}")
    a.label("k2_nobpre")
    poll_tags("act", "v149")
    a.stamp(7)
    a(f"s_add_u32 s{s_t1}, s{s_ra}, 10")
    a(f"s_lshl_b32 s{s_kx}, s{s_t1}, 19")
    for cc_ in range(NBUF):
        dma2_a(cc_ * BUF2)
        if cc_ < NBUF - 1:
            a(f"s_add_u32 s{s_kx}, s{s_kx}, {128*4096}")
    a(f"s_waitcnt vmcnt({4*(NBUF-1)})")
    a("s_barrier")
    a(f"s_add_u32 s{s_ra}, s{s_ra}, {NBUF}")
    a(f"s_mov_b32 s{s_ci}, {NBUF}")
    a(f"s_mov_b32 s{s_fill}, 0")

    def dma2_chunk():
        u_ = uid[0]
        uid[0] += 1
        a(f"s_cmp_ge_u32 s{s_ci}, 12")
        a(f"s_cselect_b32 s{s_t0}, 10, 12")
        a(f"s_cmp_ge_u32 s{s_ra}, s{s_t0}")
        a(f"s_cselect_b32 s{s_ra}, 0, s{s_ra}")
        a(f"s_cmp_eq_u32 s{s_ci}, 12")
        a(f"s_cbranch_scc0 k2_sw_{u_}")
        poll_tags(f"h{u_}", "v150")
        a(f"s_mov_b32 s{SB+2}, 819200")
        a(f"s_mov_b32 s{s_ra}, s{s_rb0}")
        for i in range(5):
            a(f"v_mov_b32 v{v2B2[i]}, v{v2B[i]}")
        a.label(f"k2_sw_{u_}")
        a(f"s_cmp_ge_u32 s{s_ci}, 12")
        a(f"s_cbranch_scc0 k2_phb_{u_}")
        b_src_phase_a(s_ra)
        a(f"s_lshl_b32 s{s_kx}, s{s_ra}, 19")
        a(f"s_branch k2_go_{u_}")
        a.label(f"k2_phb_{u_}")
        a(f"s_lshl_b32 s{s_kw}, s{s_ra}, 8")
        a(f"s_add_u32 s{s_t1}, s{s_ra}, 10")
        a(f"s_lshl_b32 s{s_kx}, s{s_t1}, 19")
        a.label(f"k2_go_{u_}")
        dma2_b(None, v2B2)
        dma2_a(None)
        a(f"s_add_u32 s{s_fill}, s{s_fill}, {BUF2}")
        a(f"s_cmp_ge_u32 s{s_fill}, {NBUF*BUF2}")
        a(f"s_cselect_b32 s{s_fill}, 0, s{s_fill}")
        a(f"s_add_u32 s{s_ci}, s{s_ci}, 1")
        a(f"s_add_u32 s{s_ra}, s{s_ra}, 1")

    for c_ in range(NBUF - 1):
        younger = 4 * (NBUF - 1 - (c_ + 1)) + 9 * c_
        a(f"s_waitcnt vmcnt({younger})")
        a("s_barrier")
        dma2_chunk()
    a(f"s_mov_b32 s{s_c}, {NBUF-1}")
    a.label("k2_lloop")
    a(f"s_waitcnt vmcnt({9*(NBUF-2)})")
    a("s_barrier")
    dma2_chunk()
    a(f"s_add_u32 s{s_c}, s{s_c}, 1")
    a(f"s_cmp_lt_u32 s{s_c}, {22-NBUF}")
    a("s_cbranch_scc1 k2_lloop")
    for c_ in range(22 - NBUF, 21):
        rem = 21 - c_
        a(f"s_waitcnt vmcnt({9*(rem-1)})")
        a("s_barrier")
    a.stamp_flush(SWS, 0xF20000, 8, 24, 25, s_w)
    a("s_endpgm")

    a.label("k_compute")
    v_rA = [12, 13]
    v_rB = [14, 15]
    v_rW = [16, 17]
    v_b1 = [18, 19, 20, 21, 22, 23]
    a(f"v_and_b32 {t0}, 15, {L}")
    a(f"v_lshrrev_b32 {t1}, 4, {L}")
    a(f"v_lshrrev_b32 {t2}, 2, {t0}")
    a(f"v_and_b32 {t3}, 3, {t0}")
    a(f"v_lshl_add_u32 {t3}, {t2}, 3, {t3}")
    a(f"s_lshl_b32 s{s_t0}, s{s_w}, 5")
    a(f"v_add_u32 {t3}, s{s_t0}, {t3}")
    a(f"v_lshlrev_b32 {t3}, 7, {t3}")
    a(f"v_bfe_u32 {t4}, {t0}, 1, 1")
    a(f"v_lshl_add_u32 {t4}, {t2}, 1, {t4}")
    a(f"v_xor_b32 {t4}, {t4}, {t1}")
    a(f"v_lshl_add_u32 v{v_rA[0]}, {t4}, 4, {t3}")
    a(f"v_xor_b32 v{v_rA[1]}, 64, v{v_rA[0]}")
    a(f"v_and_b32 {t2}, 1, {t0}")
    a(f"v_lshrrev_b32 {t3}, 1, {t0}")
    a(f"v_mul_u32_u24 {t4}, 40, {t2}")
    a(f"v_add_u32 {t4}, {t4}, {t3}")
    a(f"v_lshlrev_b32 {t4}, 7, {t4}")
    a(f"v_and_b32 {t3}, 6, {t3}")
    a(f"v_or_b32 {t3}, {t3}, {t2}")
    a(f"v_xor_b32 {t3}, {t3}, {t1}")
    a(f"v_lshl_add_u32 {t4}, {t3}, 4, {t4}")
    a(f"v_add_u32 v{v_rB[0]}, {OBU}, {t4}")
    a(f"v_xor_b32 v{v_rB[1]}, 64, v{v_rB[0]}")
    a(f"v_lshrrev_b32 {t2}, 2, {t0}")
    a(f"v_lshl_add_u32 {t2}, {t1}, 3, {t2}")
    a(f"v_mul_u32_u24 {t2}, 192, {t2}")
    a(f"v_and_b32 {t3}, 3, {t0}")
    a(f"v_lshl_add_u32 {t2}, {t3}, 3, {t2}")
    a(f"v_add_u32 {t2}, {OW1}, {t2}")
    a(f"v_and_b32 {t3}, 1, {t1}")
    a(f"v_lshl_add_u32 v{v_rW[0]}, {t3}, 5, {t2}")
    a(f"v_mul_u32_u24 {t3}, 160, {t3}")
    a(f"v_sub_u32 {t3}, 160, {t3}")
    a(f"v_add_u32 v{v_rW[1]}, {t2}, {t3}")
    a(f"s_mov_b32 s{s_rd}, 0")
    for r in range(88):
        a(f"v_mov_b32 v{ACC+r}, 0")
    a("s_waitcnt lgkmcnt(0)")
    srd(a, SWS, 38, WS_SIZE)
    srd(a, SDBG, 36, 256)
    srd(a, SW2, 32, 1966080)
    a(f"s_mul_i32 s{s_t0}, s{s_j}, 96")
    a(f"v_and_b32 {t0}, 15, {L}")
    a(f"v_add_u32 {t0}, s{s_t0}, {t0}")
    a(f"v_lshlrev_b32 {t0}, 1, {t0}")
    for jt in range(6):
        a(f"global_load_ushort v{v_b1[jt]}, {t0}, s[30:31] offset:{32*jt}")
    TOUCH = opt.get("touch", 0)
    TD = opt.get("tdist", 6)
    if TOUCH:
        nx = MA * 128; nb = NB * 40; lw = NB * 192 // 128; nw = 64 * lw
        tot = nx + 2 * nb + nw
        per = (tot + 31) // 32
        assert per <= 64
        a(f"s_cmp_eq_u32 s{s_w}, 2")
        a("s_cbranch_scc0 k1_notouch0")
        a(f"s_lshr_b32 s{s_t1}, s2, 3")
        a(f"s_mul_i32 s{s_t1}, s{s_t1}, {per}")
        a(f"v_min_u32 v40, {per-1}, {L}")
        a(f"v_add_u32 v40, s{s_t1}, v40")
        a(f"v_min_u32 v40, {tot-1}, v40")
        a(f"s_and_b32 s{s_t0}, s2, 7")
        a(f"s_and_b32 s{s_t1}, s{s_t0}, {XM-1}")
        a(f"s_lshr_b32 s{s_t0}, s{s_t0}, {XM.bit_length()-1}")
        a(f"s_mul_i32 s{s_t1}, s{s_t1}, {nx}")
        a(f"v_add_u32 v41, s{s_t1}, v40")
        a(f"v_mul_u32_u24 v41, 1280, v41")
        a(f"v_mov_b32 v42, s16")
        a(f"v_mov_b32 v43, s17")
        a(f"v_mov_b32 v44, 128")
        a(f"s_mul_i32 s{s_t1}, s{s_t0}, {nb}")
        a(f"v_subrev_u32 v45, {nx}, v40")
        a(f"v_add_u32 v46, s{s_t1}, v45")
        a(f"v_mul_u32_u24 v46, 1280, v46")
        a(f"v_cmp_le_u32 vcc, {nx}, v40")
        a("s_nop 1")
        a(f"v_cndmask_b32 v41, v41, v46, vcc")
        a(f"v_mov_b32 v47, s22")
        a(f"v_cndmask_b32 v42, v42, v47, vcc")
        a(f"v_mov_b32 v47, s23")
        a(f"v_cndmask_b32 v43, v43, v47, vcc")
        a(f"v_subrev_u32 v46, {nb*1280}, v46")
        a(f"v_cmp_le_u32 vcc, {nx+nb}, v40")
        a("s_nop 1")
        a(f"v_cndmask_b32 v41, v41, v46, vcc")
        a(f"v_mov_b32 v47, s24")
        a(f"v_cndmask_b32 v42, v42, v47, vcc")
        a(f"v_mov_b32 v47, s25")
        a(f"v_cndmask_b32 v43, v43, v47, vcc")
        a(f"v_subrev_u32 v45, {nx+2*nb}, v40")
        mg = (1 << 16) // lw + 1
        a(f"v_mul_u32_u24 v46, {mg}, v45")
        a(f"v_lshrrev_b32 v46, 16, v46")
        a(f"v_mul_u32_u24 v47, {lw}, v46")
        a(f"v_sub_u32 v47, v45, v47")
        a(f"v_mul_u32_u24 v46, 3072, v46")
        a(f"v_lshl_add_u32 v46, v47, 7, v46")
        a(f"s_mul_i32 s{s_t1}, s{s_t0}, {NB*192}")
        a(f"v_add_u32 v46, s{s_t1}, v46")
        a(f"v_cmp_le_u32 vcc, {nx+2*nb}, v40")
        a("s_nop 1")
        a(f"v_cndmask_b32 v41, v41, v46, vcc")
        a(f"v_mov_b32 v47, s28")
        a(f"v_cndmask_b32 v42, v42, v47, vcc")
        a(f"v_mov_b32 v47, s29")
        a(f"v_cndmask_b32 v43, v43, v47, vcc")
        a(f"v_mov_b32 v47, {64*3072}")
        a(f"v_cndmask_b32 v44, v44, v47, vcc")
        a(f"v_add_co_u32 v42, vcc, v42, v41")
        a("s_nop 1")
        a(f"v_addc_co_u32 v43, vcc, 0, v43, vcc")
        for q in range(TD):
            if q >= 2:
                a(f"global_load_dword v48, v[42:43], off")
            a(f"v_add_co_u32 v42, vcc, v42, v44")
            a("s_nop 1")
            a(f"v_addc_co_u32 v43, vcc, 0, v43, vcc")
        a.label("k1_notouch0")
    a(f"s_cmp_eq_u32 s{s_w}, 1")
    a("s_cbranch_scc0 k1_noclr")
    a(f"s_lshl_b32 s{s_t1}, s{s_m}, 4")
    a(f"s_add_u32 s{s_t1}, s{s_t1}, s{s_j}")
    a(f"s_mul_i32 s{s_t0}, s{s_t1}, 640")
    a(f"s_add_u32 s{s_t0}, s{s_t0}, {WS_S:#x}")
    a(f"v_lshlrev_b32 {t2}, 3, {L}")
    a(f"v_mov_b32 v30, 0")
    a(f"v_mov_b32 v31, 0")
    a(f"buffer_store_dwordx2 v[30:31], {t2}, s[{SWS}:{SWS+3}], s{s_t0} offen sc1")
    a("s_mov_b64 exec, 0xffff")
    a(f"buffer_store_dwordx2 v[30:31], {t2}, s[{SWS}:{SWS+3}], s{s_t0} offen offset:512 sc1")
    a("s_mov_b64 exec, 15")
    a(f"s_lshl_b32 s{s_t0}, s{s_t1}, 7")
    a(f"s_add_u32 s{s_t0}, s{s_t0}, {WS_D:#x}")
    a(f"buffer_store_dwordx2 v[30:31], {t2}, s[{SWS}:{SWS+3}], s{s_t0} offen sc1")
    a("s_mov_b64 exec, 1")
    a(f"s_lshl_b32 s{s_t0}, s2, 7")
    a(f"s_add_u32 s{s_t0}, s{s_t0}, {WS_F:#x}")
    a(f"buffer_store_dword v30, {t2}, s[{SWS}:{SWS+3}], s{s_t0} offen sc1")
    a("s_mov_b64 exec, -1")
    a.label("k1_noclr")
    a(f"s_cmp_eq_u32 s{s_w}, 3")
    a("s_cbranch_scc0 k1_now2a")
    a("s_cmp_ge_u32 s2, 240")
    a("s_cbranch_scc1 k1_now2a")
    a(f"s_mul_i32 s{s_t0}, s2, 0x199a")
    a(f"s_lshr_b32 s{s_t0}, s{s_t0}, 16")
    a(f"s_mul_i32 s{s_t1}, s{s_t0}, 10")
    a(f"s_sub_u32 s{s_t1}, s2, s{s_t1}")
    a(f"s_lshl_b32 s{s_t0}, s{s_t0}, 6")
    a(f"s_mul_i32 s{s_t0}, s{s_t0}, 1280")
    a(f"s_lshl_b32 s{s_t1}, s{s_t1}, 7")
    a(f"s_add_u32 s{s_t0}, s{s_t0}, s{s_t1}")
    a(f"v_lshrrev_b32 {t0}, 3, {L}")
    a(f"v_mul_u32_u24 {t0}, 1280, {t0}")
    a(f"v_and_b32 {t1}, 7, {L}")
    a(f"v_lshl_add_u32 {t0}, {t1}, 4, {t0}")
    for i in range(8):
        a(f"s_mov_b32 m0, {L_W2 + i*1024}")
        a("s_nop 0")
        a(f"buffer_load_dwordx4 {t0}, s[{SW2}:{SW2+3}], s{s_t0} offen lds")
        if i < 7:
            a(f"s_add_u32 s{s_t0}, s{s_t0}, {8*1280}")
    a.label("k1_now2a")

    def reads(q, ks):
        g = []
        for s in range(2):
            b = fa(q, s)
            g.append([f"ds_read_b128 a[{b}:{b+3}], v{v_rA[ks]} offset:{s*512}"])
        for n in range(5):
            b = fb(q, n)
            g.append([f"ds_read_b128 a[{b}:{b+3}], v{v_rB[ks]} offset:{n*1024}"])
        for n in range(6):
            b = fb(q, 5 + n)
            for h in range(2):
                if n < 5:
                    g.append([f"ds_read_b64_tr_b16 a[{b+2*h}:{b+2*h+1}], v{v_rW[0]} offset:{n*32 + ks*6144 + h*768}"])
                else:
                    g.append([f"ds_read_b64_tr_b16 a[{b+2*h}:{b+2*h+1}], v{v_rW[1]} offset:{ks*6144 + h*768}"])
        return g

    def mfmas(q):
        m = []
        for n in range(11):
            for s in range(2):
                A = fa(q, s)
                B = fb(q, n)
                m.append(f"v_mfma_f32_16x16x32_bf16 {acc(n,s)}, a[{A}:{A+3}], a[{B}:{B+3}], {acc(n,s)}")
        return m

    def addr_update():
        g = [[f"s_add_u32 s{s_t1}, s{s_rd}, {BUF}",
              f"s_cmp_ge_u32 s{s_t1}, {3*BUF}",
              f"s_cselect_b32 s{s_t1}, 0, s{s_t1}",
              f"s_sub_u32 s{s_t2}, s{s_t1}, s{s_rd}",
              f"s_mov_b32 s{s_rd}, s{s_t1}"]]
        for r in v_rA + v_rB + v_rW:
            g.append([f"v_add_u32 v{r}, s{s_t2}, v{r}"])
        return g

    a("s_barrier")
    a.stamp(1)
    emit(a, reads(0, 0))

    def body(last):
        a("s_waitcnt lgkmcnt(0)")
        front(a, mfmas(0), reads(1, 1), FP1)
        if not last:
            a("s_waitcnt lgkmcnt(0)")
            a("s_barrier")
            front(a, mfmas(1), addr_update() + reads(0, 0), FP1)
        else:
            a("s_waitcnt lgkmcnt(0)")
            interleave(a, mfmas(1), [])

    a(f"s_mov_b32 s{s_c}, 0")
    a.label("k1_loop")
    body(False)
    a(f"s_add_u32 s{s_c}, s{s_c}, 1")
    a(f"s_lshl_b32 s{s_t0}, s{s_c}, 2")
    a(f"s_add_u32 s{s_t0}, s{s_t0}, s{s_w}")
    if TOUCH:
        a(f"s_cmp_eq_u32 s{s_w}, 2")
        a("s_cbranch_scc0 k1_notouch1")
        a(f"s_cmp_gt_u32 s{s_c}, {10-TD}")
        a("s_cbranch_scc1 k1_notouch1")
        a(f"global_load_dword v48, v[42:43], off")
        a(f"v_add_co_u32 v42, vcc, v42, v44")
        a("s_nop 1")
        a(f"v_addc_co_u32 v43, vcc, 0, v43, vcc")
        a.label("k1_notouch1")
    a(f"s_cmp_eq_u32 s{s_t0}, 9")
    a("s_cbranch_scc0 k1_noclr2")
    a("s_waitcnt vmcnt(0)")
    a(f"s_lshl_b32 s{s_t0}, s{s_j}, 4")
    a(f"s_add_u32 s{s_t0}, s{s_t0}, s{s_m}")
    a(f"v_mov_b32 v30, 1")
    a(f"v_mov_b32 v31, s{s_t0}")
    a("s_mov_b64 exec, 1")
    a(f"buffer_store_byte v30, v31, s[{SDBG}:{SDBG+3}], 0 offen sc1")
    a("s_mov_b64 exec, -1")
    a(f"s_mov_b32 s{s_t0}, 0")
    a.label("k1_noclr2")
    a(f"s_cmp_eq_u32 s{s_t0}, 15")
    a("s_cbranch_scc0 k1_now2b")
    a("s_cmp_ge_u32 s2, 240")
    a("s_cbranch_scc1 k1_now2b")
    a("s_waitcnt vmcnt(0)")
    a(f"v_and_b32 {t0}, 15, {L}")
    a(f"v_lshrrev_b32 {t1}, 4, {L}")
    a(f"v_lshrrev_b32 {t2}, 2, {t0}")
    a(f"v_lshl_add_u32 {t2}, {t1}, 3, {t2}")
    a(f"v_lshlrev_b32 {t2}, 7, {t2}")
    a(f"v_and_b32 {t3}, 3, {t0}")
    a(f"v_lshl_add_u32 {t2}, {t3}, 3, {t2}")
    a(f"v_add_u32 {t2}, {L_W2}, {t2}")
    for cg in range(4):
        for hf in range(2):
            for h in range(2):
                r_ = 30 + cg * 8 + hf * 4 + h * 2
                a(f"ds_read_b64_tr_b16 v[{r_}:{r_+1}], {t2} offset:{cg*32 + hf*4096 + h*512}")
    a(f"s_mul_i32 s{s_t0}, s2, 0x199a")
    a(f"s_lshr_b32 s{s_t0}, s{s_t0}, 16")
    a(f"s_mul_i32 s{s_t1}, s{s_t0}, 10")
    a(f"s_sub_u32 s{s_t1}, s2, s{s_t1}")
    a(f"s_lshl_b32 s{s_t1}, s{s_t1}, 6")
    a(f"v_add_u32 {t0}, s{s_t1}, {t0}")
    a(f"v_mul_u32_u24 {t0}, 3072, {t0}")
    a(f"v_lshl_add_u32 {t0}, {t1}, 4, {t0}")
    a(f"s_lshl_b32 s{s_t0}, s{s_t0}, 7")
    a(f"s_add_u32 s{s_t0}, s{s_t0}, {WS_W2T:#x}")
    a("s_waitcnt lgkmcnt(0)")
    for cg in range(4):
        for hf in range(2):
            r_ = 30 + cg * 8 + hf * 4
            a(f"buffer_store_dwordx4 v[{r_}:{r_+3}], {t0}, s[{SWS}:{SWS+3}], s{s_t0} offen offset:{64*hf} sc1")
        if cg < 3:
            a(f"s_add_u32 s{s_t0}, s{s_t0}, {16*3072}")
    a(f"s_mov_b32 s{s_t0}, 0")
    a.label("k1_now2b")
    a(f"s_cmp_eq_u32 s{s_t0}, 27")
    a("s_cbranch_scc0 k1_now2c")
    a("s_cmp_ge_u32 s2, 240")
    a("s_cbranch_scc1 k1_now2c")
    a("s_waitcnt vmcnt(0)")
    a(f"s_lshl_b32 s{s_t0}, s2, 7")
    a(f"s_add_u32 s{s_t0}, s{s_t0}, {WS_F:#x}")
    a(f"v_mov_b32 v30, 1")
    a(f"v_mov_b32 v31, 0")
    a("s_mov_b64 exec, 1")
    a(f"buffer_store_dword v30, v31, s[{SWS}:{SWS+3}], s{s_t0} offen sc1")
    a("s_mov_b64 exec, -1")
    a.label("k1_now2c")
    a(f"s_cmp_lt_u32 s{s_c}, 9")
    a("s_cbranch_scc1 k1_loop")
    body(True)
    a.nop(10)
    a.stamp(2)

    ca = list(range(24, 29)); cb = list(range(29, 34)); ka = list(range(34, 39)); kb = list(range(39, 44))
    vEaddr, vSt, vTt = 44, 45, 46
    T = list(range(55, 64))
    R = list(range(2, 18))
    e0_, e1_, e2_, e3_ = [f"v{x}" for x in T[:4]]
    tq = R[0:16] + [60, 61, 62, 63]
    a(f"v_bfe_u32 {e0_}, {L}, 1, 3")
    a(f"v_lshlrev_b32 {e0_}, 5, {e0_}")
    a(f"v_add_u32 {e0_}, {L_T}, {e0_}")
    for jt in range(5):
        a(f"ds_read_b128 v[{tq[4*jt]}:{tq[4*jt+3]}], {e0_} offset:{jt*256}")
    a(f"v_and_b32 {e1_}, 1, {L}")
    a(f"v_cmp_eq_u32 vcc, 1, {e1_}")
    a("s_waitcnt lgkmcnt(0)")
    for jt in range(5):
        lr, li, kr, ki = [f"v{tq[4*jt+q]}" for q in range(4)]
        a(f"v_mov_b32 v{ca[jt]}, {lr}")
        a(f"v_sub_f32 {e2_}, 0, {li}")
        a(f"v_cndmask_b32 v{cb[jt]}, {e2_}, {li}, vcc")
        a(f"v_add_f32 {e2_}, {kr}, {kr}")
        a(f"v_sub_f32 {e3_}, 0, {e2_}")
        a(f"v_cndmask_b32 v{ka[jt]}, {e2_}, {e3_}, vcc")
        a(f"v_mul_f32 v{kb[jt]}, -2.0, {ki}")
    for i in range(1, 8):
        for jt in range(5):
            a(f"v_fmac_f32 v{ACC+jt*8+i}, v{ca[jt]}, v{ACC+jt*8+i-1}")
        for jt in range(5):
            a(f"v_fmac_f32_dpp v{ACC+jt*8+i}, v{ACC+jt*8+i-1}, v{cb[jt]} {DPP_SWAP}")
    a(f"v_lshrrev_b32 {e0_}, 4, {L}")
    a(f"s_lshl_b32 s{s_t0}, s{s_w}, 2")
    a(f"v_add_u32 {e0_}, s{s_t0}, {e0_}")
    a(f"v_mul_u32_u24 {e0_}, 320, {e0_}")
    a(f"v_and_b32 {e1_}, 15, {L}")
    a(f"v_lshl_add_u32 {e0_}, {e1_}, 2, {e0_}")
    a(f"v_add_u32 v{vEaddr}, {L_E}, {e0_}")
    for jt in range(5):
        a(f"ds_write_b32 v{vEaddr}, v{ACC+jt*8+7} offset:{jt*64}")
    a("s_waitcnt lgkmcnt(0)")
    a("s_barrier")
    a.stamp(3)
    a(f"s_lshl_b32 s{s_t0}, s{s_m}, 7")
    a(f"s_lshl_b32 s{s_t1}, s{s_w}, 5")
    a(f"s_add_u32 s{s_t0}, s{s_t0}, s{s_t1}")
    a(f"v_lshrrev_b32 {e1_}, 4, {L}")
    a(f"v_lshlrev_b32 {e1_}, 3, {e1_}")
    a(f"v_add_u32 {e1_}, s{s_t0}, {e1_}")
    a(f"v_lshlrev_b32 v{vTt}, 1, {e1_}")
    a(f"s_mul_i32 s{s_t0}, s{s_j}, 96")
    a(f"s_add_u32 s{s_t0}, s{s_t0}, 1280")
    a(f"v_and_b32 {e0_}, 15, {L}")
    a(f"v_add_u32 {e0_}, s{s_t0}, {e0_}")
    a(f"v_lshlrev_b32 {e0_}, 12, {e0_}")
    a(f"v_add_u32 v{vSt}, {e0_}, v{vTt}")
    a(f"s_mov_b32 s{s_t0}, {LOG2E:#x}")
    a(f"s_mov_b32 s{s_t1}, {LN2:#x}")
    a(f"s_mov_b32 s82, 0")
    a("s_waitcnt vmcnt(0)")
    w = [f"v{x}" for x in T]
    for jt in range(6):
        n = 5 + jt
        a(f"v_lshlrev_b32 v{v_b1[jt]}, 16, v{v_b1[jt]}")
        for pr in range(4):
            mish_pair(a, MISH_EXACT, f"v{ACC+n*8+2*pr}", f"v{ACC+n*8+2*pr+1}", f"v{ACC+n*8+pr}",
                      f"v{v_b1[jt]}", w, s_t0, s_t1, s_t2)
    for jt in range(6):
        n = 5 + jt
        a(f"buffer_store_dwordx4 v[{ACC+n*8}:{ACC+n*8+3}], v{vSt}, s[{SWS}:{SWS+3}], s82 offen sc1")
        if jt < 5:
            a(f"s_add_u32 s82, s82, {16*4096}")
    a(f"v_mov_b32 v50, {L_F}")
    a(f"v_mov_b32 v51, 1")
    a("s_mov_b64 exec, 1")
    a(f"ds_add_u32 v50, v51 offset:4")
    a("s_mov_b64 exec, -1")
    a.stamp(4)
    a(f"v_and_b32 {e0_}, 1, {L}")
    a(f"v_mul_u32_u24 {e0_}, 640, {e0_}")
    a(f"v_bfe_u32 {e1_}, {L}, 1, 3")
    a(f"v_add_u32 {e0_}, {e0_}, {e1_}")
    a(f"s_mul_i32 s{s_t0}, s{s_j}, 40")
    a(f"v_add_u32 {e0_}, s{s_t0}, {e0_}")
    a(f"v_lshlrev_b32 {e0_}, 12, {e0_}")
    a(f"v_add_u32 v{vSt}, {e0_}, v{vTt}")
    a("s_waitcnt vmcnt(0)")
    a(f"s_lshl_b32 s{s_t1}, s{s_m}, 4")
    a(f"s_add_u32 s{s_t1}, s{s_t1}, s{s_j}")
    a(f"s_lshl_b32 s83, s{s_t1}, 7")
    a(f"s_add_u32 s83, s83, {WS_D:#x}")
    a(f"s_lshl_b32 s{s_t1}, s{s_w}, 2")
    a(f"s_add_u32 s83, s83, s{s_t1}")
    a(f"v_mov_b32 v48, 1")
    a(f"v_mov_b32 v49, 0")
    a("s_mov_b64 exec, 1")
    a(f"buffer_store_dword v48, v49, s[{SWS}:{SWS+3}], s83 offen sc1")
    a("s_mov_b64 exec, -1")
    a(f"v_mov_b32 v50, {L_F}")
    a.label("k1_yspin")
    a(f"ds_read_b32 v51, v50")
    a("s_waitcnt lgkmcnt(0)")
    a(f"v_readfirstlane_b32 s{s_t0}, v51")
    a("s_nop 3")
    a(f"s_cmp_eq_u32 s{s_t0}, 1")
    a("s_cbranch_scc1 k1_ydone")
    a("s_sleep 1")
    a("s_branch k1_yspin")
    a.label("k1_ydone")
    a.stamp(5)
    cc = R[0:5]
    ct = R[5:10]
    for jt in range(5):
        a(f"ds_read_b32 v{cc[jt]}, v{vEaddr} offset:{jt*64}")
    a("s_waitcnt lgkmcnt(0)")
    for i in range(8):
        for jt in range(5):
            a(f"v_mul_f32 v{ct[jt]}, v{ca[jt]}, v{cc[jt]}")
        for jt in range(5):
            a(f"v_fmac_f32_dpp v{ct[jt]}, v{cc[jt]}, v{cb[jt]} {DPP_SWAP}")
        for jt in range(5):
            a(f"v_add_f32 v{ACC+jt*8+i}, v{ACC+jt*8+i}, v{ct[jt]}")
        cc, ct = ct, cc
    a(f"s_mov_b32 s{s_t0}, 0")
    o8 = list(range(56, 64))
    for jt in range(5):
        ob = 12 if (jt & 1) == 0 else 2
        for i in range(8):
            a(f"v_mul_f32 v{o8[i]}, v{ka[jt]}, v{ACC+jt*8+i}")
        for i in range(8):
            a(f"v_fmac_f32_dpp v{o8[i]}, v{ACC+jt*8+i}, v{kb[jt]} {DPP_SWAP}")
        for pr in range(4):
            a(f"v_cvt_pk_bf16_f32 v{ob+pr}, v{o8[2*pr]}, v{o8[2*pr+1]}")
        a(f"buffer_store_dwordx4 v[{ob}:{ob+3}], v{vSt}, s[{SWS}:{SWS+3}], s{s_t0} offen sc1")
        if jt < 4:
            a(f"s_add_u32 s{s_t0}, s{s_t0}, {8*4096}")

    AC2 = 48
    ACA = 68
    vxr = list(range(88, 98))
    vds = list(range(98, 108))
    v_g = 108
    v2rA = 16
    v2rB = [17, 18, 19, 20]

    def acc2(n):
        return f"v[{AC2+4*n}:{AC2+4*n+3}]"

    def fa2(q, s):
        return q * 48 + s * 24

    def fb2(q, s, n):
        return q * 48 + s * 24 + 4 + n * 4
    a("s_nop 1")
    a(f"v_and_b32 {t0}, 15, {L}")
    a(f"v_lshrrev_b32 {t1}, 4, {L}")
    a(f"v_lshrrev_b32 {t2}, 2, {t0}")
    a(f"v_lshl_add_u32 {t3}, {t1}, 3, {t2}")
    a(f"v_lshlrev_b32 {t3}, 7, {t3}")
    a(f"v_bfe_u32 {t4}, {t2}, 1, 1")
    a(f"v_and_b32 {t5}, 1, {t1}")
    a(f"v_lshl_add_u32 {t4}, {t5}, 1, {t4}")
    a(f"v_xor_b32 {t4}, s{s_w}, {t4}")
    a(f"v_lshl_add_u32 {t3}, {t4}, 5, {t3}")
    a(f"v_and_b32 {t4}, 3, {t0}")
    a(f"v_lshl_add_u32 v{v2rA}, {t4}, 3, {t3}")
    a(f"v_lshlrev_b32 {t3}, 8, {t0}")
    a(f"v_add_u32 {t3}, {OB2}, {t3}")
    for s in range(4):
        a(f"v_add_u32 {t4}, {4*s}, {t1}")
        a(f"v_xor_b32 {t4}, {t4}, {t0}")
        a(f"v_lshl_add_u32 v{v2rB[s]}, {t4}, 4, {t3}")
    a(f"s_mov_b32 s{s_rd}, 0")
    for r in range(20):
        a(f"v_mov_b32 v{AC2+r}, 0")
    srd(a, SOUT, 10, 5242880)
    a.stamp(6)
    a(f"s_lshl_b32 s{s_t0}, s{s_mt}, 6")
    a(f"s_lshl_b32 s{s_t1}, s{s_w}, 4")
    a(f"s_add_u32 s{s_t0}, s{s_t0}, s{s_t1}")
    a(f"v_and_b32 {t0}, 15, {L}")
    a(f"v_add_u32 {t0}, s{s_t0}, {t0}")
    v_t, v_d = 32, 33
    a(f"v_mov_b32 v{v_t}, {t0}")
    a(f"s_mul_i32 s{s_t1}, s{s_nt}, 80")
    a(f"v_lshrrev_b32 {t1}, 4, {L}")
    a(f"v_lshlrev_b32 {t1}, 2, {t1}")
    a(f"v_add_u32 v{v_d}, s{s_t1}, {t1}")
    a(f"v_mul_u32_u24 {t2}, 1280, {t0}")
    a(f"v_lshl_add_u32 {t2}, v{v_d}, 1, {t2}")
    a(f"v_lshlrev_b32 {t3}, 1, v{v_d}")
    for jt in range(5):
        a(f"global_load_dwordx2 v[{vxr[2*jt]}:{vxr[2*jt+1]}], {t2}, s[16:17] offset:{32*jt}")
        a(f"global_load_dwordx2 v[{vds[2*jt]}:{vds[2*jt+1]}], {t3}, s[8:9] offset:{32*jt}")

    def reads2(q, half):
        g = []
        for s2 in range(2):
            s = half * 2 + s2
            b = fa2(q, s2)
            for h in range(2):
                g.append([f"ds_read_b64_tr_b16 a[{b+2*h}:{b+2*h+1}], v{v2rA} offset:{s*4096 + h*512}"])
            for n in range(5):
                b = fb2(q, s2, n)
                g.append([f"ds_read_b128 a[{b}:{b+3}], v{v2rB[s]} offset:{n*4096}"])
        return g

    def mfmas2(q):
        m = []
        for s2 in range(2):
            for n in range(5):
                A = fa2(q, s2)
                B = fb2(q, s2, n)
                m.append(f"v_mfma_f32_16x16x32_bf16 {acc2(n)}, a[{B}:{B+3}], a[{A}:{A+3}], {acc2(n)}")
        return m

    def addr_update2():
        g = [[f"s_add_u32 s{s_t1}, s{s_rd}, {BUF2}",
              f"s_cmp_ge_u32 s{s_t1}, {NBUF*BUF2}",
              f"s_cselect_b32 s{s_t1}, 0, s{s_t1}",
              f"s_sub_u32 s{s_t2}, s{s_t1}, s{s_rd}",
              f"s_mov_b32 s{s_rd}, s{s_t1}"]]
        for r in [v2rA] + v2rB:
            g.append([f"v_add_u32 v{r}, s{s_t2}, v{r}"])
        return g

    a("s_barrier")
    a.stamp(7)
    emit(a, reads2(0, 0))

    def body2(last):
        a("s_waitcnt lgkmcnt(0)")
        front(a, mfmas2(0), reads2(1, 1), FP2)
        if not last:
            a("s_waitcnt lgkmcnt(0)")
            a("s_barrier")
            front(a, mfmas2(1), addr_update2() + reads2(0, 0), FP2)
        else:
            a("s_waitcnt lgkmcnt(0)")
            interleave(a, mfmas2(1), [])

    a(f"s_mov_b32 s{s_c}, 0")
    a.label("k2_loop")
    body2(False)
    a(f"s_add_u32 s{s_c}, s{s_c}, 1")
    a(f"s_cmp_eq_u32 s{s_c}, 2")
    a("s_cbranch_scc0 k2_nohtag")
    a("s_waitcnt vmcnt(0)")
    a(f"v_mov_b32 v30, 1")
    a(f"v_mov_b32 v31, 0")
    a("s_mov_b64 exec, 1")
    a(f"buffer_store_dword v30, v31, s[{SWS}:{SWS+3}], s83 offen offset:16 sc1")
    a("s_mov_b64 exec, -1")
    a.label("k2_nohtag")
    a(f"s_cmp_eq_u32 s{s_c}, 12")
    a("s_cbranch_scc0 k2_nosw")
    a.nop(10)
    for r in range(20):
        a(f"v_mov_b32 v{ACA+r}, v{AC2+r}")
    for r in range(20):
        a(f"v_mov_b32 v{AC2+r}, 0")
    a("s_nop 1")
    a.label("k2_nosw")
    a(f"s_cmp_eq_u32 s{s_c}, 16")
    a("s_cbranch_scc0 k2_nog")
    a(f"v_lshlrev_b32 {t4}, 2, v{v_t}")
    a(f"v_add_u32 {t4}, {WS_G:#x}, {t4}")
    a(f"buffer_load_dword v{v_g}, {t4}, s[{SWS}:{SWS+3}], 0 offen sc1")
    a.label("k2_nog")
    a(f"s_cmp_lt_u32 s{s_c}, 21")
    a("s_cbranch_scc1 k2_loop")
    body2(True)
    a.nop(10)
    g = f"v{v_g}"
    omg = "v34"
    a("s_waitcnt vmcnt(0)")
    a(f"v_sub_f32 {omg}, 1.0, {g}")
    a(f"v_cvt_pk_bf16_f32 {omg}, {omg}, {omg}")
    a(f"v_lshlrev_b32 {omg}, 16, {omg}")
    a(f"v_mul_u32_u24 {t0}, 2560, v{v_t}")
    a(f"v_lshl_add_u32 {t0}, v{v_d}, 2, {t0}")
    u = [f"v{x}" for x in range(36, 46)]
    for jt in range(5):
        for pr in range(2):
            xr = f"v{vxr[2*jt+pr]}"
            dr = f"v{vds[2*jt+pr]}"
            a(f"v_lshlrev_b32 {u[0]}, 16, {xr}")
            a(f"v_and_b32 {u[1]}, 0xffff0000, {xr}")
            a(f"v_lshlrev_b32 {u[2]}, 16, {dr}")
            a(f"v_and_b32 {u[3]}, 0xffff0000, {dr}")
            a(f"v_mul_f32 {u[0]}, {u[0]}, {u[2]}")
            a(f"v_mul_f32 {u[1]}, {u[1]}, {u[3]}")
            a(f"v_cvt_pk_bf16_f32 {u[0]}, {u[0]}, {u[1]}")
            a(f"v_lshlrev_b32 {u[1]}, 16, {u[0]}")
            a(f"v_and_b32 {u[0]}, 0xffff0000, {u[0]}")
            a0 = f"v{AC2+4*jt+2*pr}"
            a1 = f"v{AC2+4*jt+2*pr+1}"
            b0 = f"v{ACA+4*jt+2*pr}"
            b1 = f"v{ACA+4*jt+2*pr+1}"
            a(f"v_add_f32 {a0}, {a0}, {u[1]}")
            a(f"v_add_f32 {a1}, {a1}, {u[0]}")
            a(f"v_cvt_pk_bf16_f32 {u[2]}, {b0}, {b1}")
            a(f"v_lshlrev_b32 {u[3]}, 16, {u[2]}")
            a(f"v_and_b32 {u[2]}, 0xffff0000, {u[2]}")
            a(f"v_mul_f32 {u[3]}, {omg}, {u[3]}")
            a(f"v_mul_f32 {u[2]}, {omg}, {u[2]}")
            a(f"v_cvt_pk_bf16_f32 {u[2]}, {u[3]}, {u[2]}")
            a(f"v_lshlrev_b32 {u[3]}, 16, {u[2]}")
            a(f"v_and_b32 {u[2]}, 0xffff0000, {u[2]}")
            a(f"v_mul_f32 {a0}, {g}, {a0}")
            a(f"v_mul_f32 {a1}, {g}, {a1}")
            a(f"v_add_f32 {a0}, {a0}, {u[3]}")
            a(f"v_add_f32 {a1}, {a1}, {u[2]}")
        a(f"buffer_store_dwordx4 v[{AC2+4*jt}:{AC2+4*jt+3}], {t0}, s[{SOUT}:{SOUT+3}], 0 offen offset:{64*jt}")
    a.stamp(8)
    a.stamp_flush(SWS, 0xF00000, 9, 24, 25, s_w)
    a.label("k_end")
    a("s_endpgm")
    return dict(lds=LDS, nv=NV, na=104)


def generate(opt):
    a = Asm(); a.instr = bool(opt.get("instr", 0))
    info = gen(a, opt)
    if opt.get("noload", 0):
        a.lines = [l for l in a.lines if not (" lds" in l and "buffer_load" in l)]
    if opt.get("nocomp", 0):
        a.lines = [l for l in a.lines if not ("v_mfma" in l or ("ds_read" in l and " a[" in l))]
    out = HEADER
    out += f"; @launch grid=(256,1,1) block=(512,1,1) lds={info['lds']}\n"
    out += '.amdgcn_target "amdgcn-amd-amdhsa--gfx950"\n.text\n'
    out += f".globl {KN}\n.p2align 8\n.type {KN},@function\n"
    out += a.text()
    acc_off = (info["nv"] + 3) // 4 * 4
    out += f""".section .rodata,"a"
.p2align 6
.amdhsa_kernel {KN}
  .amdhsa_next_free_vgpr {acc_off + info['na']}
  .amdhsa_next_free_sgpr 102
  .amdhsa_accum_offset {acc_off}
  .amdhsa_group_segment_fixed_size 0
  .amdhsa_kernarg_size 136
  .amdhsa_user_sgpr_count 2
  .amdhsa_user_sgpr_kernarg_segment_ptr 1
  .amdhsa_system_sgpr_workgroup_id_x 1
.end_amdhsa_kernel
"""
    return out


if __name__ == "__main__":
    opt = {}
    outp = "cdna_kernels/" + NAME + ".s"
    for arg in sys.argv[1:]:
        if arg.startswith("-o="):
            outp = arg[3:]
        else:
            k, v = arg.split("=")
            opt[k] = int(v)
    open(outp, "w").write(generate(opt))
    print("wrote", outp)
```

```python
import sys
from gen import Asm, interleave, srd, DPP_SWAP, NAME, WS_AT, WS_G, WS_S, WS_W2T, WS_SIZE, LOG2E, LN2, INV2PI, HEADER
from gen2 import emit, mish_pair

WS_D = 0xB40000
WS_F = 0xB50000
KN = NAME + "_kernel"


def front(a, main, others, per):
    if per == 0:
        return interleave(a, main, others)
    oi = 0
    for ins in main:
        a(ins)
        for _ in range(per):
            if oi < len(others):
                for l in others[oi]:
                    a(l)
                oi += 1
    while oi < len(others):
        for l in others[oi]:
            a(l)
        oi += 1


def gen(a, opt):
    FP1 = opt.get("fp1", 0)
    FP2 = opt.get("fp2", 0)
    MISH_EXACT = opt.get("mish_exact", 0)
    BUF = 38912
    OA, OBU, OW1 = 0, 16384, 26624
    L_W2 = 3 * BUF + 2048
    L_E = 148 * 1024
    L_T = L_E + 5120
    L_F = L_T + 1280
    LDS = 160 * 1024
    BUF2 = 36864
    OA2, OB2 = 0, 16384
    NBUF = opt.get("k2_nbuf", 4)

    SX, SB, SW1, SWS, SDBG, SW2 = 40, 44, 48, 52, 56, 60
    SOUT = 40
    s_m, s_j, s_w = 64, 65, 66
    s_dA, s_dB, s_dW = 67, 68, 69
    s_kx, s_kw = 70, 71
    s_c = 72
    s_fill = 73
    s_rd = 74
    s_wv = 75
    s_t0, s_t1, s_t2, s_t3 = 76, 77, 78, 79
    s_ci = 80
    s_to = 81
    s_mt, s_nt = 12, 13
    s_ra, s_rb0 = 14, 15
    L = "v1"
    ACC = 64
    NV = 152
    t0, t1, t2, t3, t4, t5 = [f"v{x}" for x in range(24, 30)]

    def acc(n, s):
        b = ACC + n * 8 + s * 4
        return f"v[{b}:{b+3}]"

    def fa(q, s):
        return q * 52 + s * 4

    def fb(q, n):
        return q * 52 + 8 + n * 4

    a.label(KN)
    a("s_cmp_ge_u32 s2, 256")
    a("s_cbranch_scc1 k_end")
    a.stamp(0)
    a("s_load_dwordx8 s[16:23], s[0:1], 0")
    a("s_load_dwordx2 s[24:25], s[0:1], 32")
    a("s_load_dwordx4 s[4:7], s[0:1], 40")
    a("s_load_dwordx2 s[26:27], s[0:1], 56")
    a("s_load_dwordx2 s[8:9], s[0:1], 64")
    a("s_load_dwordx8 s[28:35], s[0:1], 80")
    a("s_load_dwordx2 s[10:11], s[0:1], 112")
    a("s_load_dwordx4 s[36:39], s[0:1], 120")
    a("v_lshrrev_b32 v2, 6, v0")
    a(f"v_and_b32 v1, 63, v0")
    a("s_nop 0")
    a(f"v_readfirstlane_b32 s{s_wv}, v2")
    MA = opt.get("k1_ma", 8)
    NB = 32 // MA
    XM = 16 // MA
    a(f"s_and_b32 s{s_t0}, s2, 7")
    a(f"s_lshr_b32 s{s_t1}, s2, 3")
    a(f"s_and_b32 s{s_t2}, s{s_t0}, {XM-1}")
    a(f"s_lshr_b32 s{s_t3}, s{s_t0}, {XM.bit_length()-1}")
    a(f"s_mul_i32 s{s_m}, s{s_t2}, {MA}")
    a(f"s_and_b32 s{s_t2}, s{s_t1}, {MA-1}")
    a(f"s_add_u32 s{s_m}, s{s_m}, s{s_t2}")
    a(f"s_mul_i32 s{s_j}, s{s_t3}, {NB}")
    a(f"s_lshr_b32 s{s_t2}, s{s_t1}, {MA.bit_length()-1}")
    a(f"s_add_u32 s{s_j}, s{s_j}, s{s_t2}")
    MA2 = opt.get("k2_ma", 4)
    NB2 = 32 // MA2
    XM2 = 32 // MA2
    a(f"s_and_b32 s{s_t2}, s{s_t0}, {XM2-1}")
    a(f"s_lshr_b32 s{s_t3}, s{s_t0}, {XM2.bit_length()-1}")
    a(f"s_mul_i32 s{s_mt}, s{s_t2}, {MA2}")
    a(f"s_and_b32 s{s_t2}, s{s_t1}, {MA2-1}")
    a(f"s_add_u32 s{s_mt}, s{s_mt}, s{s_t2}")
    a(f"s_mul_i32 s{s_nt}, s{s_t3}, {NB2}")
    a(f"s_lshr_b32 s{s_t2}, s{s_t1}, {MA2.bit_length()-1}")
    a(f"s_add_u32 s{s_nt}, s{s_nt}, s{s_t2}")
    a(f"s_and_b32 s{s_w}, s{s_wv}, 3")
    a(f"s_cmp_ge_u32 s{s_wv}, 4")
    a("s_cbranch_scc0 k_compute")

    v_oA = [2, 3, 4, 5]
    v_oB = [6, 7, 8]
    v_oW = [9, 10, 11]
    if opt.get("lprio", 3):
        a(f"s_setprio {opt.get('lprio', 3)}")
    a(f"s_lshl_b32 s{s_t0}, s{s_m}, 7")
    a(f"s_lshl_b32 s{s_t1}, s{s_w}, 5")
    a(f"s_add_u32 s{s_t0}, s{s_t0}, s{s_t1}")
    a(f"v_lshrrev_b32 {t0}, 3, {L}")
    a(f"v_add_u32 {t0}, s{s_t0}, {t0}")
    a(f"v_mul_u32_u24 {t0}, 1280, {t0}")
    a(f"v_bfe_u32 {t1}, {L}, 4, 1")
    a(f"v_and_b32 {t2}, 7, {L}")
    a(f"v_xor_b32 {t1}, {t1}, {t2}")
    for i in range(4):
        a(f"v_xor_b32 {t2}, {i<<1}, {t1}")
        a(f"v_lshlrev_b32 {t2}, 4, {t2}")
        a(f"v_add_u32 {t2}, {t0}, {t2}")
        a(f"v_add_u32 v{v_oA[i]}, {i*8*1280}, {t2}")
    a(f"s_mul_i32 s{s_t0}, s{s_w}, 20")
    a(f"s_lshr_b32 s{s_t1}, s{s_w}, 1")
    a(f"s_mul_i32 s{s_t2}, s{s_t1}, 40")
    a(f"s_mul_i32 s{s_t3}, s{s_j}, 40")
    a(f"s_sub_u32 s{s_t3}, s{s_t3}, s{s_t2}")
    for i in range(3):
        a(f"v_lshrrev_b32 {t0}, 3, {L}")
        a(f"v_add_u32 {t0}, s{s_t0}, {t0}")
        if i:
            a(f"v_add_u32 {t0}, {8*i}, {t0}")
        a(f"v_and_b32 {t1}, 6, {t0}")
        a(f"v_or_b32 {t1}, s{s_t1}, {t1}")
        a(f"v_and_b32 {t2}, 7, {L}")
        a(f"v_xor_b32 {t1}, {t1}, {t2}")
        a(f"v_lshlrev_b32 {t1}, 4, {t1}")
        a(f"v_add_u32 {t0}, s{s_t3}, {t0}")
        a(f"v_mul_u32_u24 {t0}, 1280, {t0}")
        a(f"v_add_u32 v{v_oB[i]}, {t0}, {t1}")
    a(f"s_lshl_b32 s{s_t0}, s{s_w}, 4")
    a(f"s_mul_i32 s{s_t1}, s{s_j}, 192")
    for i in range(3):
        a(f"v_add_u32 {t0}, {i*64}, {L}")
        a(f"v_mul_u32_u24 {t1}, 0x5556, {t0}")
        a(f"v_lshrrev_b32 {t1}, 18, {t1}")
        a(f"v_mul_u32_u24 {t2}, 12, {t1}")
        a(f"v_sub_u32 {t2}, {t0}, {t2}")
        a(f"v_lshrrev_b32 {t3}, 1, {t2}")
        a(f"v_bfe_u32 {t4}, {t1}, 3, 1")
        a(f"v_sub_u32 {t3}, {t3}, {t4}")
        a(f"v_add_u32 {t4}, 6, {t3}")
        a(f"v_cmp_gt_i32 vcc, 0, {t3}")
        a("s_nop 1")
        a(f"v_cndmask_b32 {t3}, {t3}, {t4}, vcc")
        a(f"v_and_b32 {t2}, 1, {t2}")
        a(f"v_lshl_add_u32 {t3}, {t3}, 1, {t2}")
        a(f"v_lshlrev_b32 {t3}, 4, {t3}")
        a(f"v_add_u32 {t1}, s{s_t0}, {t1}")
        a(f"v_mul_u32_u24 {t1}, 3072, {t1}")
        a(f"v_add_u32 {t1}, s{s_t1}, {t1}")
        a(f"v_add_u32 v{v_oW[i]}, {t1}, {t3}")
    a(f"s_lshl_b32 s{s_dA}, s{s_w}, 12")
    a(f"s_mul_i32 s{s_dB}, s{s_w}, 2560")
    a(f"s_add_u32 s{s_dB}, s{s_dB}, {OBU}")
    a(f"s_mul_i32 s{s_dW}, s{s_w}, 3072")
    a(f"s_add_u32 s{s_dW}, s{s_dW}, {OW1}")
    RM1 = opt.get("k1_rmod", 7)
    a(f"s_mul_i32 s{s_t0}, s{s_m}, {opt.get('k1_rm', 1)}")
    a(f"s_mul_i32 s{s_t1}, s{s_j}, {opt.get('k1_rj', 3)}")
    a(f"s_add_u32 s{s_t0}, s{s_t0}, s{s_t1}")
    a(f"s_mul_i32 s{s_t1}, s{s_t0}, {65536 // RM1 + 1}")
    a(f"s_lshr_b32 s{s_t1}, s{s_t1}, 16")
    a(f"s_mul_i32 s{s_t1}, s{s_t1}, {RM1}")
    a(f"s_sub_u32 s{s_t0}, s{s_t0}, s{s_t1}")
    a(f"s_lshl_b32 s{s_kx}, s{s_t0}, 7")
    a(f"s_mul_i32 s{s_kw}, s{s_t0}, {64*3072}")
    a(f"s_mov_b32 s{s_fill}, 0")
    a("s_waitcnt lgkmcnt(0)")
    srd(a, SX, 16, 2621440)
    a(f"s_cmp_ge_u32 s{s_w}, 2")
    a(f"s_cselect_b32 s{s_t0}, s24, s22")
    a(f"s_cselect_b32 s{s_t1}, s25, s23")
    srd(a, SB, s_t0, 819200)
    srd(a, SW1, 28, 1966080)

    s_dA2, s_dB2 = 60, 61
    def all_cleared(tag):
        a(f"v_lshlrev_b32 {t1}, 2, {L}")
        a(f"s_mov_b32 s{s_to}, 0")
        a.label(f"k_ac_{tag}")
        a(f"buffer_load_dword {t0}, {t1}, s[{SDBG}:{SDBG+3}], 0 offen sc1")
        a("s_waitcnt vmcnt(0)")
        a(f"v_cmp_eq_u32 vcc, 0x01010101, {t0}")
        a("s_cmp_eq_u64 vcc, -1")
        a(f"s_cbranch_scc1 k_acd_{tag}")
        a("s_sleep 8")
        a(f"s_add_u32 s{s_to}, s{s_to}, 1")
        a(f"s_cmp_lt_u32 s{s_to}, 0x80000")
        a(f"s_cbranch_scc1 k_ac_{tag}")
        a.label(f"k_acd_{tag}")

    v2A = [104, 105, 106, 107]
    v2B = [108, 109, 110, 111, 112]
    v2B2 = [144, 145, 146, 147, 148]
    v2X = [113, 151, 22, 23, 33]
    RM2 = opt.get("k2_rmod", 3)

    def p2_setup(tag):
        a(f"s_lshl_b32 s{s_t0}, s{s_w}, 5")
        a(f"v_lshrrev_b32 {t0}, 3, {L}")
        a(f"v_add_u32 {t0}, s{s_t0}, {t0}")
        a(f"v_lshlrev_b32 {t0}, 7, {t0}")
        a(f"s_mul_i32 s{s_t1}, s{s_mt}, {2816*128}")
        a(f"v_add_u32 {t0}, s{s_t1}, {t0}")
        a(f"v_bfe_u32 {t1}, {L}, 1, 2")
        a(f"v_bfe_u32 {t2}, {L}, 4, 1")
        a(f"v_xor_b32 {t1}, {t1}, {t2}")
        a(f"v_and_b32 {t2}, 1, {L}")
        for i in range(4):
            a(f"v_xor_b32 {t3}, {(i&1)<<1}, {t1}")
            a(f"v_lshl_add_u32 {t3}, {t3}, 1, {t2}")
            a(f"v_lshl_add_u32 {t3}, {t3}, 4, {t0}")
            a(f"v_add_u32 v{v2A[i]}, {i*8*128}, {t3}")
        a(f"s_mul_i32 s{s_t0}, s{s_w}, 20")
        a(f"s_mul_i32 s{s_t1}, s{s_nt}, 80")
        for i in range(5):
            a(f"v_lshrrev_b32 {t0}, 4, {L}")
            a(f"v_add_u32 {t0}, s{s_t0}, {t0}")
            if i:
                a(f"v_add_u32 {t0}, {4*i}, {t0}")
            a(f"v_xor_b32 {t1}, {t0}, {L}")
            a(f"v_and_b32 {t1}, 15, {t1}")
            a(f"v_lshlrev_b32 {t1}, 4, {t1}")
            a(f"v_add_u32 {t0}, s{s_t1}, {t0}")
            a(f"v_mul_u32_u24 {t2}, 1280, {t0}")
            a(f"v_add_u32 v{v2B[i]}, {t2}, {t1}")
            a(f"v_mul_u32_u24 {t2}, 3072, {t0}")
            a(f"v_add_u32 {t2}, {t2}, {t1}")
            a(f"v_add_u32 v{v2B2[i]}, {WS_W2T:#x}, {t2}")
        a(f"s_lshl_b32 s{s_dA2}, s{s_w}, 12")
        a(f"s_mul_i32 s{s_dB2}, s{s_w}, 5120")
        a(f"s_add_u32 s{s_dB2}, s{s_dB2}, {OB2}")
        a(f"s_mul_i32 s{s_t0}, s{s_mt}, {opt.get('k2_rm', 2)}")
        a(f"s_mul_i32 s{s_t1}, s{s_nt}, {opt.get('k2_rn', 1)}")
        a(f"s_add_u32 s{s_t0}, s{s_t0}, s{s_t1}")
        a(f"s_mul_i32 s{s_t1}, s{s_t0}, {65536 // RM2 + 1}")
        a(f"s_lshr_b32 s{s_t1}, s{s_t1}, 16")
        a(f"s_mul_i32 s{s_t1}, s{s_t1}, {RM2}")
        a(f"s_sub_u32 s{s_ra}, s{s_t0}, s{s_t1}")
        a(f"s_mov_b32 s{s_rb0}, s{s_ra}")

        a(f"s_mul_i32 s{s_t1}, s{s_nt}, 80")
        for i in range(5):
            a(f"v_lshrrev_b32 {t0}, 4, {L}")
            if i:
                a(f"v_add_u32 {t0}, {4*i}, {t0}")
            a(f"v_xor_b32 {t1}, {t0}, {L}")
            a(f"v_and_b32 {t1}, 15, {t1}")
            a(f"v_lshlrev_b32 {t1}, 4, {t1}")
            a(f"v_add_u32 {t0}, s{s_t1}, {t0}")
            a(f"v_mul_u32_u24 {t2}, 3072, {t0}")
            a(f"v_add_u32 {t2}, {t2}, {t1}")
            a(f"v_add_u32 v{v2X[i]}, {WS_W2T:#x}, {t2}")
        a(f"s_lshr_b32 s{s_t0}, s{s_mt}, 1")
        a(f"s_lshl_b32 s{s_t0}, s{s_t0}, 11")
        a(f"s_add_u32 s{s_t0}, s{s_t0}, {WS_D:#x}")
        a(f"v_lshrrev_b32 v149, 2, {L}")
        a(f"v_lshlrev_b32 v149, 7, v149")
        a(f"v_and_b32 v150, 3, {L}")
        a(f"v_lshl_add_u32 v149, v150, 2, v149")
        a(f"v_add_u32 v149, s{s_t0}, v149")
        a(f"v_add_u32 v150, 16, v149")

    def poll_tags(tag, vaddr):
        a(f"s_mov_b32 s{s_to}, 0")
        a.label(f"k2_poll_{tag}")
        a(f"buffer_load_dword {t2}, {vaddr}, s[{SWS}:{SWS+3}], 0 offen sc1")
        a("s_waitcnt vmcnt(0)")
        a(f"v_cmp_eq_u32 vcc, 1, {t2}")
        a("s_cmp_eq_u64 vcc, -1")
        a(f"s_cbranch_scc1 k2_polld_{tag}")
        a(f"s_sleep {opt.get('psleep', 6)}")
        a(f"s_add_u32 s{s_to}, s{s_to}, 1")
        a(f"s_cmp_lt_u32 s{s_to}, 0x40000")
        a(f"s_cbranch_scc1 k2_poll_{tag}")
        a.label(f"k2_polld_{tag}")

    def gate_fn():
        a(f"s_cmp_ge_u32 s{s_w}, 2")
        a("s_cbranch_scc0 k1_g_skip")
        accg = "v34"
        u = [f"v{x}" for x in range(35, 43)]
        a(f"v_mov_b32 {accg}, 0")
        for i in range(20):
            xr, wr = f"v{gx[i]}", f"v{gw[i]}"
            a(f"v_lshlrev_b32 {u[0]}, 16, {xr}")
            a(f"v_and_b32 {u[1]}, 0xffff0000, {xr}")
            a(f"v_lshlrev_b32 {u[2]}, 16, {wr}")
            a(f"v_and_b32 {u[3]}, 0xffff0000, {wr}")
            a(f"v_mul_f32 {u[0]}, {u[0]}, {u[2]}")
            a(f"v_mul_f32 {u[1]}, {u[1]}, {u[3]}")
            a(f"v_cvt_pk_bf16_f32 {u[0]}, {u[0]}, {u[1]}")
            a(f"v_lshlrev_b32 {u[1]}, 16, {u[0]}")
            a(f"v_and_b32 {u[0]}, 0xffff0000, {u[0]}")
            a(f"v_add_f32 {accg}, {accg}, {u[1]}")
            a(f"v_add_f32 {accg}, {accg}, {u[0]}")
        for sh in (8, 4, 2, 1):
            a("s_nop 1")
            a(f"v_add_f32_dpp {accg}, {accg}, {accg} row_ror:{sh} row_mask:0xf bank_mask:0xf")
        a("s_nop 0")
        a(f"v_cvt_pk_bf16_f32 {accg}, {accg}, {accg}")
        a(f"v_lshlrev_b32 {accg}, 16, {accg}")
        a(f"v_mul_f32 {accg}, 0xbfb8aa3b, {accg}")
        a(f"v_exp_f32 {accg}, {accg}")
        a("s_nop 0")
        a(f"v_add_f32 {accg}, 1.0, {accg}")
        a(f"v_rcp_f32 {accg}, {accg}")
        a("s_nop 0")
        a(f"v_cvt_pk_bf16_f32 {accg}, {accg}, {accg}")
        a(f"v_lshlrev_b32 {accg}, 16, {accg}")
        a(f"v_subrev_u32 {u[0]}, 384, v0")
        a(f"v_lshrrev_b32 {u[0]}, 4, {u[0]}")
        a(f"s_lshl_b32 s{s_t0}, s{s_m}, 7")
        a(f"s_lshl_b32 s{s_t1}, s{s_j}, 3")
        a(f"s_add_u32 s{s_t0}, s{s_t0}, s{s_t1}")
        a(f"v_add_u32 {u[0]}, s{s_t0}, {u[0]}")
        a(f"v_lshlrev_b32 {u[0]}, 2, {u[0]}")
        a(f"v_add_u32 {u[0]}, {WS_G:#x}, {u[0]}")
        a(f"v_and_b32 {u[1]}, 15, {L}")
        a(f"v_cmp_eq_u32 vcc, 0, {u[1]}")
        a(f"s_and_saveexec_b64 s[{s_t2}:{s_t2+1}], vcc")
        a(f"buffer_store_dword {accg}, {u[0]}, s[{SWS}:{SWS+3}], 0 offen sc1")
        a(f"s_mov_b64 exec, s[{s_t2}:{s_t2+1}]")
        a.label("k1_g_skip")


    pc = [30, 31, 32]
    def const_fn():
        a(f"s_cmp_eq_u32 s{s_w}, 0")
        a("s_cbranch_scc0 k1_c_notw0")
        lre, lim, ldt = [f"v{x}" for x in pc]
        c = [f"v{x}" for x in range(34, 54)]
        a(f"v_lshlrev_b32 {lre}, 16, {lre}")
        a(f"v_lshlrev_b32 {lim}, 16, {lim}")
        a(f"v_lshlrev_b32 {ldt}, 16, {ldt}")
        a(f"s_mov_b32 s{s_t0}, {LOG2E:#x}")
        a(f"s_mov_b32 s{s_t1}, {INV2PI:#x}")
        a(f"v_mul_f32 {ldt}, s{s_t0}, {ldt}")
        a(f"v_exp_f32 {ldt}, {ldt}")
        a("s_nop 0")
        a(f"v_cvt_pk_bf16_f32 {ldt}, {ldt}, {ldt}")
        a(f"v_lshlrev_b32 {ldt}, 16, {ldt}")
        a(f"v_mul_f32 {c[0]}, {ldt}, {lre}")
        a(f"v_mul_f32 {c[1]}, {ldt}, {lim}")
        a(f"v_mul_f32 {c[0]}, s{s_t0}, {c[0]}")
        a(f"v_exp_f32 {c[0]}, {c[0]}")
        a(f"v_mul_f32 {c[1]}, s{s_t1}, {c[1]}")
        a(f"v_fract_f32 {c[1]}, {c[1]}")
        a(f"v_cos_f32 {c[2]}, {c[1]}")
        a(f"v_sin_f32 {c[3]}, {c[1]}")
        a("s_nop 0")
        a(f"v_mul_f32 {c[4]}, {c[0]}, {c[2]}")
        a(f"v_mul_f32 {c[5]}, {c[0]}, {c[3]}")
        a(f"v_mul_f32 {c[12]}, {lre}, {lre}")
        a(f"v_fmac_f32 {c[12]}, {lim}, {lim}")
        a(f"v_rcp_f32 {c[13]}, {c[12]}")
        a("s_nop 0")
        a(f"v_fma_f32 {c[14]}, -{c[12]}, {c[13]}, 1.0")
        a(f"v_fmac_f32 {c[13]}, {c[14]}, {c[13]}")
        a(f"v_add_f32 {c[14]}, -1.0, {c[4]}")
        a(f"v_mul_f32 {c[6]}, {c[14]}, {lre}")
        a(f"v_fmac_f32 {c[6]}, {c[5]}, {lim}")
        a(f"v_mul_f32 {c[6]}, {c[6]}, {c[13]}")
        a(f"v_mul_f32 {c[7]}, {c[5]}, {lre}")
        a(f"v_fma_f32 {c[7]}, -{c[14]}, {lim}, {c[7]}")
        a(f"v_mul_f32 {c[7]}, {c[7]}, {c[13]}")

        def csq(dr, di, sr, si):
            a(f"v_mul_f32 {c[15]}, {si}, {si}")
            a(f"v_fma_f32 {dr if dr != sr else c[16]}, {sr}, {sr}, -{c[15]}")
            a(f"v_mul_f32 {c[15]}, {sr}, {si}")
            a(f"v_add_f32 {di}, {c[15]}, {c[15]}")
            if dr == sr:
                a(f"v_mov_b32 {dr}, {c[16]}")
        csq(c[8], c[9], c[4], c[5])
        csq(c[8], c[9], c[8], c[9])
        csq(c[8], c[9], c[8], c[9])
        csq(c[10], c[11], c[8], c[9])
        csq(c[10], c[11], c[10], c[11])
        csq(c[10], c[11], c[10], c[11])
        csq(c[10], c[11], c[10], c[11])
        a(f"v_lshlrev_b32 {c[15]}, 5, {L}")
        a(f"v_add_u32 {c[15]}, {L_T}, {c[15]}")
        a(f"v_cmp_gt_u32 vcc, 40, {L}")
        a(f"s_and_saveexec_b64 s[{s_t2}:{s_t2+1}], vcc")
        a(f"ds_write_b128 {c[15]}, v[38:41]")
        a(f"ds_write_b128 {c[15]}, v[42:45] offset:16")
        a(f"s_mov_b64 exec, s[{s_t2}:{s_t2+1}]")
        a(f"v_mov_b32 {c[15]}, {L_F}")
        a(f"v_mov_b32 {c[16]}, 0")
        a(f"ds_write_b32 {c[15]}, {c[16]}")
        a(f"ds_write_b32 {c[15]}, {c[16]} offset:4")
        a.label("k1_c_notw0")


    def dma_chunk():
        for i in range(4):
            a(f"s_add_u32 s{s_t0}, s{s_dA}, s{s_fill}")
            a(f"s_add_u32 m0, s{s_t0}, {i*1024}")
            a("s_nop 0")
            a(f"buffer_load_dwordx4 v{v_oA[i]}, s[{SX}:{SX+3}], s{s_kx} offen lds")
        for i in range(3):
            a(f"s_add_u32 s{s_t0}, s{s_dW}, s{s_fill}")
            a(f"s_add_u32 m0, s{s_t0}, {i*1024}")
            a("s_nop 0")
            a(f"buffer_load_dwordx4 v{v_oW[i]}, s[{SW1}:{SW1+3}], s{s_kw} offen lds")
        for i in range(3):
            a(f"s_add_u32 s{s_t0}, s{s_dB}, s{s_fill}")
            a(f"s_add_u32 m0, s{s_t0}, {i*1024}")
            if i == 2:
                a("s_mov_b64 exec, 0xffffffff")
                a(f"buffer_load_dwordx4 v{v_oB[i]}, s[{SB}:{SB+3}], s{s_kx} offen lds")
                a("s_mov_b64 exec, -1")
            else:
                a("s_nop 0")
                a(f"buffer_load_dwordx4 v{v_oB[i]}, s[{SB}:{SB+3}], s{s_kx} offen lds")
        a(f"s_add_u32 s{s_kx}, s{s_kx}, 128")
        a(f"s_add_u32 s{s_kw}, s{s_kw}, {64*3072}")
        a(f"s_cmp_ge_u32 s{s_kx}, 1280")
        a(f"s_cselect_b32 s{s_kx}, 0, s{s_kx}")
        a(f"s_cselect_b32 s{s_kw}, 0, s{s_kw}")
        a(f"s_add_u32 s{s_fill}, s{s_fill}, {BUF}")
        a(f"s_cmp_ge_u32 s{s_fill}, {3*BUF}")
        a(f"s_cselect_b32 s{s_fill}, 0, s{s_fill}")

    dma_chunk()
    srd(a, SWS, 38, WS_SIZE)
    srd(a, SDBG, 36, 256)
    pc = [30, 31, 32]
    gx = list(range(64, 84))
    gw = list(range(84, 104))
    a(f"s_cmp_eq_u32 s{s_w}, 0")
    a("s_cbranch_scc0 k1_p_notw0")
    a(f"s_mul_i32 s{s_t0}, s{s_j}, 40")
    a(f"v_min_u32 {t0}, 39, {L}")
    a(f"v_add_u32 {t0}, s{s_t0}, {t0}")
    a(f"v_lshlrev_b32 {t0}, 1, {t0}")
    a(f"global_load_ushort v{pc[0]}, {t0}, s[18:19]")
    a(f"global_load_ushort v{pc[1]}, {t0}, s[20:21]")
    a(f"global_load_ushort v{pc[2]}, {t0}, s[26:27]")
    a.label("k1_p_notw0")
    a(f"s_cmp_ge_u32 s{s_w}, 2")
    a("s_cbranch_scc0 k1_p_notgate")
    a(f"v_subrev_u32 {t0}, 384, v0")
    a(f"v_lshrrev_b32 {t1}, 4, {t0}")
    a(f"s_lshl_b32 s{s_t0}, s{s_m}, 7")
    a(f"s_lshl_b32 s{s_t1}, s{s_j}, 3")
    a(f"s_add_u32 s{s_t0}, s{s_t0}, s{s_t1}")
    a(f"v_add_u32 {t1}, s{s_t0}, {t1}")
    a(f"v_mul_u32_u24 {t1}, 1280, {t1}")
    a(f"v_and_b32 {t0}, 15, {t0}")
    a(f"v_lshlrev_b32 {t0}, 4, {t0}")
    a(f"v_add_u32 {t1}, {t1}, {t0}")
    for i in range(5):
        a(f"global_load_dwordx4 v[{gx[4*i]}:{gx[4*i+3]}], {t1}, s[16:17] offset:{256*i}")
        a(f"global_load_dwordx4 v[{gw[4*i]}:{gw[4*i+3]}], {t0}, s[34:35] offset:{256*i}")
    a.label("k1_p_notgate")
    dma_chunk()
    a("s_waitcnt vmcnt(10)")
    a("s_barrier")
    dma_chunk()
    p2_setup("a")
    a(f"s_mov_b32 s{s_c}, 0")
    a.label("k1_lloop")
    a("s_waitcnt vmcnt(10)")
    a("s_barrier")
    dma_chunk()
    a(f"s_cmp_eq_u32 s{s_c}, 1")
    a("s_cbranch_scc0 k1_l_no4")
    const_fn()
    a.label("k1_l_no4")
    a(f"s_add_u32 s{s_c}, s{s_c}, 1")
    a(f"s_cmp_lt_u32 s{s_c}, 7")
    a("s_cbranch_scc1 k1_lloop")
    if opt.get("ctouch", 1):
        a(f"s_cmp_eq_u32 s{s_w}, 3")
        a("s_cbranch_scc0 k1_noct")
        a(f"s_lshr_b32 s{s_t0}, s2, 3")
        a(f"s_mul_i32 s{s_t0}, s{s_t0}, {200*128}")
        a(f"v_lshlrev_b32 {t0}, 7, {L}")
        a(f"v_add_u32 {t0}, s{s_t0}, {t0}")
        for base in (4, 6):
            for q in range(4):
                if q == 3:
                    a("s_mov_b64 exec, 0xff")
                a(f"global_load_dword v{34+q+base}, {t0}, s[{base}:{base+1}] offset:0" if q == 0 else
                  f"v_add_u32 {t1}, {q*64*128}, {t0}")
                if q:
                    a(f"global_load_dword v{34+q+base}, {t1}, s[{base}:{base+1}]")
                if q == 3:
                    a("s_mov_b64 exec, -1")
    a.label("k1_noct")
    a("s_waitcnt vmcnt(10) lgkmcnt(0)")
    a("s_barrier")
    a("s_waitcnt vmcnt(0)")
    a("s_barrier")

    a(f"s_cmp_eq_u32 s{s_w}, 0")
    a("s_cbranch_scc1 k1_chainwave")
    a("s_barrier")
    a("s_setprio 0")
    gate_fn()
    all_cleared("a")
    if opt.get("wtouch", 0):
        a(f"s_cmp_eq_u32 s{s_w}, 1")
        a("s_cbranch_scc0 k1_nowt")
        for q in range(4):
            a(f"v_add_u32 {t1}, {64*q}, {L}")
            a(f"v_min_u32 {t1}, 239, {t1}")
            a(f"v_lshlrev_b32 {t1}, 7, {t1}")
            a(f"v_add_u32 {t1}, {WS_F:#x}, {t1}")
            poll_tags(f"wt{q}", t1)
        a(f"s_lshr_b32 s{s_t0}, s2, 3")
        a(f"s_mul_i32 s{s_t0}, s{s_t0}, {480*128}")
        a(f"s_add_u32 s{s_t0}, s{s_t0}, {WS_W2T:#x}")
        a(f"v_lshlrev_b32 {t0}, 7, {L}")
        for q in range(8):
            if q == 7:
                a("s_mov_b64 exec, 0xffffffff")
            a(f"buffer_load_dword v{40+q}, {t0}, s[{SWS}:{SWS+3}], s{s_t0} offen sc1")
            if q == 7:
                a("s_mov_b64 exec, -1")
            else:
                a(f"s_add_u32 s{s_t0}, s{s_t0}, {64*128}")
        a.label("k1_nowt")
    a(f"s_setprio {opt.get('lprio', 3)}")
    a("s_branch k2_lsetup")

    a.label("k1_chainwave")
    a("s_setprio 3")
    vcol = [2, 3]; vP = [4, 5]; vT = [6, 7]; a8 = [8, 9]; b8 = [10, 11]; a128 = [12, 13]; b128 = [14, 15]
    vCaddr = [16, 17]
    vE = [list(range(64, 80)), list(range(80, 96))]
    vG = [list(range(34, 64, 2)), list(range(114, 144, 2))]
    a(f"v_mov_b32 v{vcol[0]}, {L}")
    a(f"v_add_u32 v{vcol[1]}, 64, {L}")
    a(f"v_min_u32 v{vcol[1]}, 79, v{vcol[1]}")
    for q in range(2):
        a(f"v_lshrrev_b32 {t0}, 1, v{vcol[q]}")
        a(f"v_lshlrev_b32 {t0}, 5, {t0}")
        a(f"v_add_u32 {t0}, {L_T}, {t0}")
        a(f"ds_read_b128 v[{96+4*q}:{99+4*q}], {t0} offset:16")
        a(f"v_lshlrev_b32 v{vCaddr[q]}, 2, v{vcol[q]}")
        a(f"v_add_u32 v{vCaddr[q]}, {L_E}, v{vCaddr[q]}")
    a(f"v_and_b32 {t1}, 1, {L}")
    a(f"v_cmp_eq_u32 vcc, 1, {t1}")
    a("s_waitcnt lgkmcnt(0)")
    for q in range(2):
        b = 96 + 4 * q
        a(f"v_mov_b32 v{a8[q]}, v{b}")
        a(f"v_sub_f32 {t2}, 0, v{b+1}")
        a(f"v_cndmask_b32 v{b8[q]}, {t2}, v{b+1}, vcc")
        a(f"v_mov_b32 v{a128[q]}, v{b+2}")
        a(f"v_sub_f32 {t2}, 0, v{b+3}")
        a(f"v_cndmask_b32 v{b128[q]}, {t2}, v{b+3}, vcc")
    a("s_barrier")
    a.stamp(3)
    for G in range(16):
        for q in range(2):
            a(f"ds_read_b32 v{vE[q][G]}, v{vCaddr[q]} offset:{G*320}")
        if G == 6 or G == 13:
            a("s_waitcnt lgkmcnt(0)")
    a("s_waitcnt lgkmcnt(0)")
    for q in range(2):
        a(f"v_mov_b32 v{vP[q]}, v{vE[q][0]}")
    a("s_nop 0")

    def chain_step(aa, bb, src):
        for q in range(2):
            a(f"v_fma_f32 v{vT[q]}, v{aa[q]}, v{vP[q]}, v{src[q]}")
        for q in range(2):
            a(f"v_fmac_f32_dpp v{vT[q]}, v{vP[q]}, v{bb[q]} {DPP_SWAP}")
        for q in range(2):
            a(f"v_mov_b32 v{vP[q]}, v{vT[q]}")
    for G in range(1, 16):
        chain_step(a8, b8, [vE[0][G], vE[1][G]])
    a(f"s_lshl_b32 s{s_t0}, s{s_m}, 4")
    a(f"s_add_u32 s{s_t0}, s{s_t0}, s{s_j}")
    a(f"s_mul_i32 s{s_t0}, s{s_t0}, 640")
    a(f"s_add_u32 s{s_t0}, s{s_t0}, {WS_S:#x}")
    a(f"v_lshlrev_b32 {t0}, 3, {L}")
    a(f"v_mov_b32 v18, v{vP[0]}")
    a(f"v_mov_b32 v19, 1")
    a(f"v_mov_b32 v20, v{vP[1]}")
    a(f"v_mov_b32 v21, 1")
    a(f"buffer_store_dwordx2 v[18:19], {t0}, s[{SWS}:{SWS+3}], s{s_t0} offen sc1")
    a("s_mov_b64 exec, 0xffff")
    a(f"buffer_store_dwordx2 v[20:21], {t0}, s[{SWS}:{SWS+3}], s{s_t0} offen offset:512 sc1")
    a("s_mov_b64 exec, -1")
    a.stamp(4)
    all_cleared("b")
    for q in range(2):
        a(f"v_mov_b32 v{vP[q]}, 0")
    a(f"s_cmp_eq_u32 s{s_m}, 0")
    a("s_cbranch_scc1 k1_e5_chain2")
    a(f"v_lshlrev_b32 {t0}, 3, v{vcol[0]}")
    a(f"v_lshlrev_b32 {t1}, 3, v{vcol[1]}")
    a(f"s_mov_b32 s{s_to}, 0")
    a.label("k1_poll")
    a(f"s_mul_i32 s{s_t0}, s{s_j}, 640")
    a(f"s_add_u32 s{s_t0}, s{s_t0}, {WS_S:#x}")
    for mp in range(15):
        a(f"buffer_load_dwordx2 v[{vG[0][mp]}:{vG[0][mp]+1}], {t0}, s[{SWS}:{SWS+3}], s{s_t0} offen sc1")
        a(f"buffer_load_dwordx2 v[{vG[1][mp]}:{vG[1][mp]+1}], {t1}, s[{SWS}:{SWS+3}], s{s_t0} offen sc1")
        if mp < 14:
            a(f"s_add_u32 s{s_t0}, s{s_t0}, {16*640}")
            a(f"s_cmp_eq_u32 s{s_m}, {mp+1}")
            a("s_cbranch_scc1 k1_poll_w")
    a.label("k1_poll_w")
    a("s_waitcnt vmcnt(0)")
    a(f"v_mov_b32 {t2}, 1")
    for mp in range(15):
        a(f"v_and_b32 {t2}, {t2}, v{vG[0][mp]+1}")
        a(f"v_and_b32 {t2}, {t2}, v{vG[1][mp]+1}")
        if mp < 14:
            a(f"s_cmp_eq_u32 s{s_m}, {mp+1}")
            a("s_cbranch_scc1 k1_poll_c")
    a.label("k1_poll_c")
    a(f"v_cmp_eq_u32 vcc, 1, {t2}")
    a("s_cmp_eq_u64 vcc, -1")
    a("s_cbranch_scc1 k1_poll_done")
    a(f"s_add_u32 s{s_to}, s{s_to}, 1")
    a(f"s_cmp_lt_u32 s{s_to}, 0x40000")
    a("s_cbranch_scc1 k1_poll")
    a.label("k1_poll_done")
    a.stamp(5)
    for mp in range(15):
        chain_step(a128, b128, [vG[0][mp], vG[1][mp]])
        if mp < 14:
            a(f"s_cmp_eq_u32 s{s_m}, {mp+1}")
            a("s_cbranch_scc1 k1_e5_chain2")
    a.label("k1_e5_chain2")
    a("s_nop 1")
    for G in range(16):
        a(f"ds_write_b32 v{vCaddr[0]}, v{vP[0]} offset:{G*320}")
        a("s_mov_b64 exec, 0xffff")
        a(f"ds_write_b32 v{vCaddr[1]}, v{vP[1]} offset:{G*320}")
        a("s_mov_b64 exec, -1")
        if G < 15:
            chain_step(a8, b8, [vE[0][G], vE[1][G]])
    a("s_waitcnt lgkmcnt(0)")
    a(f"v_mov_b32 {t0}, {L_F}")
    a(f"v_mov_b32 {t1}, 1")
    a(f"ds_write_b32 {t0}, {t1}")
    a(f"s_setprio {opt.get('lprio', 3)}")
    a.stamp(6)

    a.label("k2_lsetup")
    srd(a, SB, 38, WS_SIZE)
    assert RM2 + NBUF <= 10
    uid = [0]

    def b_src_phase_a(idx_sgpr):
        a(f"s_cmp_ge_u32 s{idx_sgpr}, 5")
        a(f"s_cselect_b32 s{SB}, s6, s4")
        a(f"s_cselect_b32 s{s_t0}, s7, s5")
        a(f"s_cselect_b32 s{s_t1}, 5, 0")
        a(f"s_and_b32 s{SB+1}, s{s_t0}, 0xffff")
        a(f"s_sub_u32 s{s_t1}, s{idx_sgpr}, s{s_t1}")
        a(f"s_lshl_b32 s{s_kw}, s{s_t1}, 8")

    def dma2_b(fill, regs):
        for i in range(5):
            a(f"s_add_u32 m0, s{s_dB2}, {fill + i*1024}" if isinstance(fill, int) else f"s_add_u32 s{s_t0}, s{s_dB2}, s{s_fill}")
            if not isinstance(fill, int):
                a(f"s_add_u32 m0, s{s_t0}, {i*1024}")
            a("s_nop 0")
            a(f"buffer_load_dwordx4 v{regs[i]}, s[{SB}:{SB+3}], s{s_kw} offen sc1 lds")

    def dma2_a(fill):
        for i in range(4):
            a(f"s_add_u32 m0, s{s_dA2}, {fill + i*1024}" if isinstance(fill, int) else f"s_add_u32 s{s_t0}, s{s_dA2}, s{s_fill}")
            if not isinstance(fill, int):
                a(f"s_add_u32 m0, s{s_t0}, {i*1024}")
            a("s_nop 0")
            a(f"buffer_load_dwordx4 v{v2A[i]}, s[{SWS}:{SWS+3}], s{s_kx} offen sc1 lds")

    if opt.get("bwait", 1):
        a(f"v_mov_b32 {t4}, {L_F}")
        a.label("k2_bspin")
        a(f"ds_read_b32 {t5}, {t4} offset:4")
        a("s_waitcnt lgkmcnt(0)")
        a(f"v_readfirstlane_b32 s{s_t0}, {t5}")
        a("s_nop 3")
        a(f"s_cmp_eq_u32 s{s_t0}, 4")
        a("s_cbranch_scc1 k2_bgo")
        a("s_sleep 4")
        a("s_branch k2_bspin")
        a.label("k2_bgo")
    a(f"v_min_u32 {t1}, 47, {L}")
    a(f"v_lshrrev_b32 {t3}, 1, {t1}")
    a(f"v_and_b32 {t1}, 1, {t1}")
    a(f"s_mul_i32 s{s_t0}, s{s_nt}, 80")
    a(f"s_lshr_b32 s{s_t1}, s{s_t0}, 6")
    a(f"s_add_u32 s{s_t0}, s{s_t0}, 79")
    a(f"s_lshr_b32 s{s_t0}, s{s_t0}, 6")
    a(f"s_sub_u32 s{s_t0}, s{s_t0}, s{s_t1}")
    a(f"v_mul_u32_u24 {t1}, s{s_t0}, {t1}")
    a(f"v_add_u32 {t1}, s{s_t1}, {t1}")
    a(f"v_mul_u32_u24 {t3}, 10, {t3}")
    a(f"v_add_u32 {t1}, {t1}, {t3}")
    a(f"v_lshlrev_b32 {t1}, 7, {t1}")
    a(f"v_add_u32 {t1}, {WS_F:#x}, {t1}")
    poll_tags("w2", t1)

    def pre_chunk(cc_, do_b=True, do_a=True):
        if do_b:
            a(f"s_add_u32 s{s_t3}, s{s_ra}, {cc_}")
            a(f"s_lshl_b32 s{s_kw}, s{s_t3}, 8")
            dma2_b(cc_ * BUF2, v2B2)
        if do_a:
            a(f"s_add_u32 s{s_t1}, s{s_ra}, {10 + cc_}")
            a(f"s_lshl_b32 s{s_kx}, s{s_t1}, 14")
            dma2_a(cc_ * BUF2)
    pre_chunk(0, True, False)
    poll_tags("act", "v149")
    a.stamp(7)
    pre_chunk(0, False, True)
    pre_chunk(1)
    a("s_waitcnt vmcnt(9)")
    a("s_barrier")
    for cc_ in range(2, NBUF):
        pre_chunk(cc_)
    a(f"s_add_u32 s{s_ra}, s{s_ra}, {NBUF}")
    a(f"s_mov_b32 s{s_ci}, {NBUF}")
    a(f"s_mov_b32 s{s_fill}, 0")

    def dma2_chunk():
        u_ = uid[0]
        uid[0] += 1
        a(f"s_cmp_ge_u32 s{s_ci}, 12")
        a(f"s_cselect_b32 s{s_t0}, 10, 12")
        a(f"s_cmp_ge_u32 s{s_ra}, s{s_t0}")
        a(f"s_cselect_b32 s{s_ra}, 0, s{s_ra}")
        a(f"s_cmp_eq_u32 s{s_ci}, 12")
        a(f"s_cbranch_scc0 k2_sw_{u_}")
        poll_tags(f"h{u_}", "v150")
        a(f"s_mov_b32 s{SB+2}, 819200")
        a(f"s_mov_b32 s{s_ra}, s{s_rb0}")
        for i in range(5):
            a(f"v_mov_b32 v{v2B2[i]}, v{v2B[i]}")
        a.label(f"k2_sw_{u_}")
        a(f"s_cmp_ge_u32 s{s_ci}, 12")
        a(f"s_cbranch_scc0 k2_phb_{u_}")
        b_src_phase_a(s_ra)
        a(f"s_lshl_b32 s{s_kx}, s{s_ra}, 14")
        a(f"s_branch k2_go_{u_}")
        a.label(f"k2_phb_{u_}")
        a(f"s_lshl_b32 s{s_kw}, s{s_ra}, 8")
        a(f"s_add_u32 s{s_t1}, s{s_ra}, 10")
        a(f"s_lshl_b32 s{s_kx}, s{s_t1}, 14")
        a.label(f"k2_go_{u_}")
        dma2_b(None, v2B2)
        dma2_a(None)
        a(f"s_add_u32 s{s_fill}, s{s_fill}, {BUF2}")
        a(f"s_cmp_ge_u32 s{s_fill}, {NBUF*BUF2}")
        a(f"s_cselect_b32 s{s_fill}, 0, s{s_fill}")
        a(f"s_add_u32 s{s_ci}, s{s_ci}, 1")
        a(f"s_add_u32 s{s_ra}, s{s_ra}, 1")

    a(f"s_mov_b32 s{s_c}, 0")
    a.label("k2_lloop")
    a(f"s_waitcnt vmcnt({9*(NBUF-2)})")
    a("s_barrier")
    dma2_chunk()
    a(f"s_add_u32 s{s_c}, s{s_c}, 1")
    a(f"s_cmp_lt_u32 s{s_c}, {22-NBUF}")
    a("s_cbranch_scc1 k2_lloop")
    for c_ in range(22 - NBUF, 21):
        rem = 21 - c_
        a(f"s_waitcnt vmcnt({9*(rem-1)})")
        a("s_barrier")
    a.stamp_flush(SWS, 0xF20000, 8, 24, 25, s_w)
    a("s_endpgm")

    a.label("k_compute")
    v_rA = [12, 13]
    v_rB = [14, 15]
    v_rW = [16, 17]
    v_b1 = [18, 19, 20, 21, 22, 23]
    a(f"v_and_b32 {t0}, 15, {L}")
    a(f"v_lshrrev_b32 {t1}, 4, {L}")
    a(f"v_lshrrev_b32 {t2}, 2, {t0}")
    a(f"v_and_b32 {t3}, 3, {t0}")
    a(f"v_lshl_add_u32 {t3}, {t2}, 3, {t3}")
    a(f"s_lshl_b32 s{s_t0}, s{s_w}, 5")
    a(f"v_add_u32 {t3}, s{s_t0}, {t3}")
    a(f"v_lshlrev_b32 {t3}, 7, {t3}")
    a(f"v_bfe_u32 {t4}, {t0}, 1, 1")
    a(f"v_lshl_add_u32 {t4}, {t2}, 1, {t4}")
    a(f"v_xor_b32 {t4}, {t4}, {t1}")
    a(f"v_lshl_add_u32 v{v_rA[0]}, {t4}, 4, {t3}")
    a(f"v_xor_b32 v{v_rA[1]}, 64, v{v_rA[0]}")
    a(f"v_and_b32 {t2}, 1, {t0}")
    a(f"v_lshrrev_b32 {t3}, 1, {t0}")
    a(f"v_mul_u32_u24 {t4}, 40, {t2}")
    a(f"v_add_u32 {t4}, {t4}, {t3}")
    a(f"v_lshlrev_b32 {t4}, 7, {t4}")
    a(f"v_and_b32 {t3}, 6, {t3}")
    a(f"v_or_b32 {t3}, {t3}, {t2}")
    a(f"v_xor_b32 {t3}, {t3}, {t1}")
    a(f"v_lshl_add_u32 {t4}, {t3}, 4, {t4}")
    a(f"v_add_u32 v{v_rB[0]}, {OBU}, {t4}")
    a(f"v_xor_b32 v{v_rB[1]}, 64, v{v_rB[0]}")
    a(f"v_lshrrev_b32 {t2}, 2, {t0}")
    a(f"v_lshl_add_u32 {t2}, {t1}, 3, {t2}")
    a(f"v_mul_u32_u24 {t2}, 192, {t2}")
    a(f"v_and_b32 {t3}, 3, {t0}")
    a(f"v_lshl_add_u32 {t2}, {t3}, 3, {t2}")
    a(f"v_add_u32 {t2}, {OW1}, {t2}")
    a(f"v_and_b32 {t3}, 1, {t1}")
    a(f"v_lshl_add_u32 v{v_rW[0]}, {t3}, 5, {t2}")
    a(f"v_mul_u32_u24 {t3}, 160, {t3}")
    a(f"v_sub_u32 {t3}, 160, {t3}")
    a(f"v_add_u32 v{v_rW[1]}, {t2}, {t3}")
    a(f"s_mov_b32 s{s_rd}, 0")
    for r in range(88):
        a(f"v_mov_b32 v{ACC+r}, 0")
    a("s_waitcnt lgkmcnt(0)")
    srd(a, SWS, 38, WS_SIZE)
    srd(a, SDBG, 36, 256)
    srd(a, SW2, 32, 1966080)
    a(f"s_mul_i32 s{s_t0}, s{s_j}, 96")
    a(f"v_and_b32 {t0}, 15, {L}")
    a(f"v_add_u32 {t0}, s{s_t0}, {t0}")
    a(f"v_lshlrev_b32 {t0}, 1, {t0}")
    for jt in range(6):
        a(f"global_load_ushort v{v_b1[jt]}, {t0}, s[30:31] offset:{32*jt}")
    TOUCH = opt.get("touch", 0)
    TD = opt.get("tdist", 6)
    if TOUCH:
        nx = MA * 128; nb = NB * 40; lw = NB * 192 // 128; nw = 64 * lw
        tot = nx + 2 * nb + nw
        per = (tot + 31) // 32
        assert per <= 64
        a(f"s_cmp_eq_u32 s{s_w}, 2")
        a("s_cbranch_scc0 k1_notouch0")
        a(f"s_lshr_b32 s{s_t1}, s2, 3")
        a(f"s_mul_i32 s{s_t1}, s{s_t1}, {per}")
        a(f"v_min_u32 v40, {per-1}, {L}")
        a(f"v_add_u32 v40, s{s_t1}, v40")
        a(f"v_min_u32 v40, {tot-1}, v40")
        a(f"s_and_b32 s{s_t0}, s2, 7")
        a(f"s_and_b32 s{s_t1}, s{s_t0}, {XM-1}")
        a(f"s_lshr_b32 s{s_t0}, s{s_t0}, {XM.bit_length()-1}")
        a(f"s_mul_i32 s{s_t1}, s{s_t1}, {nx}")
        a(f"v_add_u32 v41, s{s_t1}, v40")
        a(f"v_mul_u32_u24 v41, 1280, v41")
        a(f"v_mov_b32 v42, s16")
        a(f"v_mov_b32 v43, s17")
        a(f"v_mov_b32 v44, 128")
        a(f"s_mul_i32 s{s_t1}, s{s_t0}, {nb}")
        a(f"v_subrev_u32 v45, {nx}, v40")
        a(f"v_add_u32 v46, s{s_t1}, v45")
        a(f"v_mul_u32_u24 v46, 1280, v46")
        a(f"v_cmp_le_u32 vcc, {nx}, v40")
        a("s_nop 1")
        a(f"v_cndmask_b32 v41, v41, v46, vcc")
        a(f"v_mov_b32 v47, s22")
        a(f"v_cndmask_b32 v42, v42, v47, vcc")
        a(f"v_mov_b32 v47, s23")
        a(f"v_cndmask_b32 v43, v43, v47, vcc")
        a(f"v_subrev_u32 v46, {nb*1280}, v46")
        a(f"v_cmp_le_u32 vcc, {nx+nb}, v40")
        a("s_nop 1")
        a(f"v_cndmask_b32 v41, v41, v46, vcc")
        a(f"v_mov_b32 v47, s24")
        a(f"v_cndmask_b32 v42, v42, v47, vcc")
        a(f"v_mov_b32 v47, s25")
        a(f"v_cndmask_b32 v43, v43, v47, vcc")
        a(f"v_subrev_u32 v45, {nx+2*nb}, v40")
        mg = (1 << 16) // lw + 1
        a(f"v_mul_u32_u24 v46, {mg}, v45")
        a(f"v_lshrrev_b32 v46, 16, v46")
        a(f"v_mul_u32_u24 v47, {lw}, v46")
        a(f"v_sub_u32 v47, v45, v47")
        a(f"v_mul_u32_u24 v46, 3072, v46")
        a(f"v_lshl_add_u32 v46, v47, 7, v46")
        a(f"s_mul_i32 s{s_t1}, s{s_t0}, {NB*192}")
        a(f"v_add_u32 v46, s{s_t1}, v46")
        a(f"v_cmp_le_u32 vcc, {nx+2*nb}, v40")
        a("s_nop 1")
        a(f"v_cndmask_b32 v41, v41, v46, vcc")
        a(f"v_mov_b32 v47, s28")
        a(f"v_cndmask_b32 v42, v42, v47, vcc")
        a(f"v_mov_b32 v47, s29")
        a(f"v_cndmask_b32 v43, v43, v47, vcc")
        a(f"v_mov_b32 v47, {64*3072}")
        a(f"v_cndmask_b32 v44, v44, v47, vcc")
        a(f"v_add_co_u32 v42, vcc, v42, v41")
        a("s_nop 1")
        a(f"v_addc_co_u32 v43, vcc, 0, v43, vcc")
        for q in range(TD):
            if q >= 2:
                a(f"global_load_dword v48, v[42:43], off")
            a(f"v_add_co_u32 v42, vcc, v42, v44")
            a("s_nop 1")
            a(f"v_addc_co_u32 v43, vcc, 0, v43, vcc")
        a.label("k1_notouch0")
    a(f"s_cmp_eq_u32 s{s_w}, 1")
    a("s_cbranch_scc0 k1_noclr")
    a(f"s_lshl_b32 s{s_t1}, s{s_m}, 4")
    a(f"s_add_u32 s{s_t1}, s{s_t1}, s{s_j}")
    a(f"s_mul_i32 s{s_t0}, s{s_t1}, 640")
    a(f"s_add_u32 s{s_t0}, s{s_t0}, {WS_S:#x}")
    a(f"v_lshlrev_b32 {t2}, 3, {L}")
    a(f"v_mov_b32 v30, 0")
    a(f"v_mov_b32 v31, 0")
    a(f"buffer_store_dwordx2 v[30:31], {t2}, s[{SWS}:{SWS+3}], s{s_t0} offen sc1")
    a("s_mov_b64 exec, 0xffff")
    a(f"buffer_store_dwordx2 v[30:31], {t2}, s[{SWS}:{SWS+3}], s{s_t0} offen offset:512 sc1")
    a("s_mov_b64 exec, 15")
    a(f"s_lshl_b32 s{s_t0}, s{s_t1}, 7")
    a(f"s_add_u32 s{s_t0}, s{s_t0}, {WS_D:#x}")
    a(f"buffer_store_dwordx2 v[30:31], {t2}, s[{SWS}:{SWS+3}], s{s_t0} offen sc1")
    a("s_mov_b64 exec, 1")
    a(f"s_lshl_b32 s{s_t0}, s2, 7")
    a(f"s_add_u32 s{s_t0}, s{s_t0}, {WS_F:#x}")
    a(f"buffer_store_dword v30, {t2}, s[{SWS}:{SWS+3}], s{s_t0} offen sc1")
    a("s_mov_b64 exec, -1")
    a.label("k1_noclr")
    a(f"s_cmp_eq_u32 s{s_w}, 3")
    a("s_cbranch_scc0 k1_now2a")
    a("s_cmp_ge_u32 s2, 240")
    a("s_cbranch_scc1 k1_now2a")
    a(f"s_mul_i32 s{s_t0}, s2, 0x199a")
    a(f"s_lshr_b32 s{s_t0}, s{s_t0}, 16")
    a(f"s_mul_i32 s{s_t1}, s{s_t0}, 10")
    a(f"s_sub_u32 s{s_t1}, s2, s{s_t1}")
    a(f"s_lshl_b32 s{s_t0}, s{s_t0}, 6")
    a(f"s_mul_i32 s{s_t0}, s{s_t0}, 1280")
    a(f"s_lshl_b32 s{s_t1}, s{s_t1}, 7")
    a(f"s_add_u32 s{s_t0}, s{s_t0}, s{s_t1}")
    a(f"v_lshrrev_b32 {t0}, 3, {L}")
    a(f"v_mul_u32_u24 {t0}, 1280, {t0}")
    a(f"v_and_b32 {t1}, 7, {L}")
    a(f"v_lshl_add_u32 {t0}, {t1}, 4, {t0}")
    for i in range(8):
        a(f"s_mov_b32 m0, {L_W2 + i*1024}")
        a("s_nop 0")
        a(f"buffer_load_dwordx4 {t0}, s[{SW2}:{SW2+3}], s{s_t0} offen lds")
        if i < 7:
            a(f"s_add_u32 s{s_t0}, s{s_t0}, {8*1280}")
    a.label("k1_now2a")

    def reads(q, ks):
        g = []
        for s in range(2):
            b = fa(q, s)
            g.append([f"ds_read_b128 a[{b}:{b+3}], v{v_rA[ks]} offset:{s*512}"])
        for n in range(5):
            b = fb(q, n)
            g.append([f"ds_read_b128 a[{b}:{b+3}], v{v_rB[ks]} offset:{n*1024}"])
        for n in range(6):
            b = fb(q, 5 + n)
            for h in range(2):
                if n < 5:
                    g.append([f"ds_read_b64_tr_b16 a[{b+2*h}:{b+2*h+1}], v{v_rW[0]} offset:{n*32 + ks*6144 + h*768}"])
                else:
                    g.append([f"ds_read_b64_tr_b16 a[{b+2*h}:{b+2*h+1}], v{v_rW[1]} offset:{ks*6144 + h*768}"])
        return g

    def mfmas(q):
        m = []
        for n in range(11):
            for s in range(2):
                A = fa(q, s)
                B = fb(q, n)
                m.append(f"v_mfma_f32_16x16x32_bf16 {acc(n,s)}, a[{A}:{A+3}], a[{B}:{B+3}], {acc(n,s)}")
        return m

    def addr_update():
        g = [[f"s_add_u32 s{s_t1}, s{s_rd}, {BUF}",
              f"s_cmp_ge_u32 s{s_t1}, {3*BUF}",
              f"s_cselect_b32 s{s_t1}, 0, s{s_t1}",
              f"s_sub_u32 s{s_t2}, s{s_t1}, s{s_rd}",
              f"s_mov_b32 s{s_rd}, s{s_t1}"]]
        for r in v_rA + v_rB + v_rW:
            g.append([f"v_add_u32 v{r}, s{s_t2}, v{r}"])
        return g

    a("s_barrier")
    a.stamp(1)
    emit(a, reads(0, 0))

    def body(last):
        a("s_waitcnt lgkmcnt(0)")
        front(a, mfmas(0), reads(1, 1), FP1)
        if not last:
            a("s_waitcnt lgkmcnt(0)")
            a("s_barrier")
            front(a, mfmas(1), addr_update() + reads(0, 0), FP1)
        else:
            a("s_waitcnt lgkmcnt(0)")
            interleave(a, mfmas(1), [])

    a(f"s_mov_b32 s{s_c}, 0")
    a.label("k1_loop")
    body(False)
    a(f"s_add_u32 s{s_c}, s{s_c}, 1")
    a(f"s_lshl_b32 s{s_t0}, s{s_c}, 2")
    a(f"s_add_u32 s{s_t0}, s{s_t0}, s{s_w}")
    if TOUCH:
        a(f"s_cmp_eq_u32 s{s_w}, 2")
        a("s_cbranch_scc0 k1_notouch1")
        a(f"s_cmp_gt_u32 s{s_c}, {10-TD}")
        a("s_cbranch_scc1 k1_notouch1")
        a(f"global_load_dword v48, v[42:43], off")
        a(f"v_add_co_u32 v42, vcc, v42, v44")
        a("s_nop 1")
        a(f"v_addc_co_u32 v43, vcc, 0, v43, vcc")
        a.label("k1_notouch1")
    a(f"s_cmp_eq_u32 s{s_t0}, 9")
    a("s_cbranch_scc0 k1_noclr2")
    a("s_waitcnt vmcnt(0)")
    a(f"s_lshl_b32 s{s_t0}, s{s_j}, 4")
    a(f"s_add_u32 s{s_t0}, s{s_t0}, s{s_m}")
    a(f"v_mov_b32 v30, 1")
    a(f"v_mov_b32 v31, s{s_t0}")
    a("s_mov_b64 exec, 1")
    a(f"buffer_store_byte v30, v31, s[{SDBG}:{SDBG+3}], 0 offen sc1")
    a("s_mov_b64 exec, -1")
    a(f"s_mov_b32 s{s_t0}, 0")
    a.label("k1_noclr2")
    a(f"s_cmp_eq_u32 s{s_t0}, 15")
    a("s_cbranch_scc0 k1_now2b")
    a("s_cmp_ge_u32 s2, 240")
    a("s_cbranch_scc1 k1_now2b")
    a("s_waitcnt vmcnt(0)")
    a(f"v_and_b32 {t0}, 15, {L}")
    a(f"v_lshrrev_b32 {t1}, 4, {L}")
    a(f"v_lshrrev_b32 {t2}, 2, {t0}")
    a(f"v_lshl_add_u32 {t2}, {t1}, 3, {t2}")
    a(f"v_lshlrev_b32 {t2}, 7, {t2}")
    a(f"v_and_b32 {t3}, 3, {t0}")
    a(f"v_lshl_add_u32 {t2}, {t3}, 3, {t2}")
    a(f"v_add_u32 {t2}, {L_W2}, {t2}")
    for cg in range(4):
        for hf in range(2):
            for h in range(2):
                r_ = 30 + cg * 8 + hf * 4 + h * 2
                a(f"ds_read_b64_tr_b16 v[{r_}:{r_+1}], {t2} offset:{cg*32 + hf*4096 + h*512}")
    a(f"s_mul_i32 s{s_t0}, s2, 0x199a")
    a(f"s_lshr_b32 s{s_t0}, s{s_t0}, 16")
    a(f"s_mul_i32 s{s_t1}, s{s_t0}, 10")
    a(f"s_sub_u32 s{s_t1}, s2, s{s_t1}")
    a(f"s_lshl_b32 s{s_t1}, s{s_t1}, 6")
    a(f"v_add_u32 {t0}, s{s_t1}, {t0}")
    a(f"v_mul_u32_u24 {t0}, 3072, {t0}")
    a(f"v_lshl_add_u32 {t0}, {t1}, 4, {t0}")
    a(f"s_lshl_b32 s{s_t0}, s{s_t0}, 7")
    a(f"s_add_u32 s{s_t0}, s{s_t0}, {WS_W2T:#x}")
    a("s_waitcnt lgkmcnt(0)")
    for cg in range(4):
        for hf in range(2):
            r_ = 30 + cg * 8 + hf * 4
            a(f"buffer_store_dwordx4 v[{r_}:{r_+3}], {t0}, s[{SWS}:{SWS+3}], s{s_t0} offen offset:{64*hf} sc1")
        if cg < 3:
            a(f"s_add_u32 s{s_t0}, s{s_t0}, {16*3072}")
    a(f"s_mov_b32 s{s_t0}, 0")
    a.label("k1_now2b")
    a(f"s_cmp_eq_u32 s{s_t0}, 27")
    a("s_cbranch_scc0 k1_now2c")
    a("s_cmp_ge_u32 s2, 240")
    a("s_cbranch_scc1 k1_now2c")
    a("s_waitcnt vmcnt(0)")
    a(f"s_lshl_b32 s{s_t0}, s2, 7")
    a(f"s_add_u32 s{s_t0}, s{s_t0}, {WS_F:#x}")
    a(f"v_mov_b32 v30, 1")
    a(f"v_mov_b32 v31, 0")
    a("s_mov_b64 exec, 1")
    a(f"buffer_store_dword v30, v31, s[{SWS}:{SWS+3}], s{s_t0} offen sc1")
    a("s_mov_b64 exec, -1")
    a.label("k1_now2c")
    a(f"s_cmp_lt_u32 s{s_c}, 9")
    a("s_cbranch_scc1 k1_loop")
    body(True)
    a.nop(10)
    a.stamp(2)

    ca = list(range(24, 29)); cb = list(range(29, 34)); ka = list(range(34, 39)); kb = list(range(39, 44))
    vEaddr, vSt, vTt = 44, 45, 46
    T = list(range(55, 64))
    R = list(range(2, 18))
    e0_, e1_, e2_, e3_ = [f"v{x}" for x in T[:4]]
    tq = R[0:16] + [60, 61, 62, 63]
    a(f"v_bfe_u32 {e0_}, {L}, 1, 3")
    a(f"v_lshlrev_b32 {e0_}, 5, {e0_}")
    a(f"v_add_u32 {e0_}, {L_T}, {e0_}")
    for jt in range(5):
        a(f"ds_read_b128 v[{tq[4*jt]}:{tq[4*jt+3]}], {e0_} offset:{jt*256}")
    a(f"v_and_b32 {e1_}, 1, {L}")
    a(f"v_cmp_eq_u32 vcc, 1, {e1_}")
    a("s_waitcnt lgkmcnt(0)")
    for jt in range(5):
        lr, li, kr, ki = [f"v{tq[4*jt+q]}" for q in range(4)]
        a(f"v_mov_b32 v{ca[jt]}, {lr}")
        a(f"v_sub_f32 {e2_}, 0, {li}")
        a(f"v_cndmask_b32 v{cb[jt]}, {e2_}, {li}, vcc")
        a(f"v_add_f32 {e2_}, {kr}, {kr}")
        a(f"v_sub_f32 {e3_}, 0, {e2_}")
        a(f"v_cndmask_b32 v{ka[jt]}, {e2_}, {e3_}, vcc")
        a(f"v_mul_f32 v{kb[jt]}, -2.0, {ki}")
    for i in range(1, 8):
        for jt in range(5):
            a(f"v_fmac_f32 v{ACC+jt*8+i}, v{ca[jt]}, v{ACC+jt*8+i-1}")
        for jt in range(5):
            a(f"v_fmac_f32_dpp v{ACC+jt*8+i}, v{ACC+jt*8+i-1}, v{cb[jt]} {DPP_SWAP}")
    a(f"v_lshrrev_b32 {e0_}, 4, {L}")
    a(f"s_lshl_b32 s{s_t0}, s{s_w}, 2")
    a(f"v_add_u32 {e0_}, s{s_t0}, {e0_}")
    a(f"v_mul_u32_u24 {e0_}, 320, {e0_}")
    a(f"v_and_b32 {e1_}, 15, {L}")
    a(f"v_lshl_add_u32 {e0_}, {e1_}, 2, {e0_}")
    a(f"v_add_u32 v{vEaddr}, {L_E}, {e0_}")
    for jt in range(5):
        a(f"ds_write_b32 v{vEaddr}, v{ACC+jt*8+7} offset:{jt*64}")
    a("s_waitcnt lgkmcnt(0)")
    a("s_barrier")
    a.stamp(3)
    a(f"s_lshl_b32 s{s_t0}, s{s_m}, 7")
    a(f"s_lshl_b32 s{s_t1}, s{s_w}, 5")
    a(f"s_add_u32 s{s_t0}, s{s_t0}, s{s_t1}")
    a(f"v_lshrrev_b32 {e1_}, 4, {L}")
    a(f"v_lshlrev_b32 {e1_}, 3, {e1_}")
    a(f"v_add_u32 {e1_}, s{s_t0}, {e1_}")
    a(f"v_lshrrev_b32 {e2_}, 6, {e1_}")
    a(f"v_mul_u32_u24 {e2_}, {2816*128}, {e2_}")
    a(f"v_and_b32 {e1_}, 63, {e1_}")
    a(f"v_lshl_add_u32 v{vTt}, {e1_}, 1, {e2_}")
    a(f"s_mul_i32 s{s_t0}, s{s_j}, 96")
    a(f"s_add_u32 s{s_t0}, s{s_t0}, 1280")
    a(f"v_and_b32 {e0_}, 15, {L}")
    a(f"v_add_u32 {e0_}, s{s_t0}, {e0_}")
    a(f"v_lshlrev_b32 {e0_}, 7, {e0_}")
    a(f"v_add_u32 v{vSt}, {e0_}, v{vTt}")
    a(f"s_mov_b32 s{s_t0}, {LOG2E:#x}")
    a(f"s_mov_b32 s{s_t1}, {LN2:#x}")
    a(f"s_mov_b32 s82, 0")
    a("s_waitcnt vmcnt(0)")
    w = [f"v{x}" for x in T]
    for jt in range(6):
        n = 5 + jt
        a(f"v_lshlrev_b32 v{v_b1[jt]}, 16, v{v_b1[jt]}")
        for pr in range(4):
            mish_pair(a, MISH_EXACT, f"v{ACC+n*8+2*pr}", f"v{ACC+n*8+2*pr+1}", f"v{ACC+n*8+pr}",
                      f"v{v_b1[jt]}", w, s_t0, s_t1, s_t2)
        a(f"buffer_store_dwordx4 v[{ACC+n*8}:{ACC+n*8+3}], v{vSt}, s[{SWS}:{SWS+3}], s82 offen sc1")
        if jt < 5:
            a(f"s_add_u32 s82, s82, {16*128}")
    a(f"v_mov_b32 v50, {L_F}")
    a(f"v_mov_b32 v51, 1")
    a("s_mov_b64 exec, 1")
    a(f"ds_add_u32 v50, v51 offset:4")
    a("s_mov_b64 exec, -1")
    a.stamp(4)
    a(f"v_and_b32 {e0_}, 1, {L}")
    a(f"v_mul_u32_u24 {e0_}, 640, {e0_}")
    a(f"v_bfe_u32 {e1_}, {L}, 1, 3")
    a(f"v_add_u32 {e0_}, {e0_}, {e1_}")
    a(f"s_mul_i32 s{s_t0}, s{s_j}, 40")
    a(f"v_add_u32 {e0_}, s{s_t0}, {e0_}")
    a(f"v_lshlrev_b32 {e0_}, 7, {e0_}")
    a(f"v_add_u32 v{vSt}, {e0_}, v{vTt}")
    a("s_waitcnt vmcnt(0)")
    a(f"s_lshl_b32 s{s_t1}, s{s_m}, 4")
    a(f"s_add_u32 s{s_t1}, s{s_t1}, s{s_j}")
    a(f"s_lshl_b32 s83, s{s_t1}, 7")
    a(f"s_add_u32 s83, s83, {WS_D:#x}")
    a(f"s_lshl_b32 s{s_t1}, s{s_w}, 2")
    a(f"s_add_u32 s83, s83, s{s_t1}")
    a(f"v_mov_b32 v48, 1")
    a(f"v_mov_b32 v49, 0")
    a("s_mov_b64 exec, 1")
    a(f"buffer_store_dword v48, v49, s[{SWS}:{SWS+3}], s83 offen sc1")
    a("s_mov_b64 exec, -1")
    a(f"v_mov_b32 v50, {L_F}")
    a.label("k1_yspin")
    a(f"ds_read_b32 v51, v50")
    a("s_waitcnt lgkmcnt(0)")
    a(f"v_readfirstlane_b32 s{s_t0}, v51")
    a("s_nop 3")
    a(f"s_cmp_eq_u32 s{s_t0}, 1")
    a("s_cbranch_scc1 k1_ydone")
    a("s_sleep 1")
    a("s_branch k1_yspin")
    a.label("k1_ydone")
    a.stamp(5)
    cc = R[0:5]
    ct = R[5:10]
    for jt in range(5):
        a(f"ds_read_b32 v{cc[jt]}, v{vEaddr} offset:{jt*64}")
    a("s_waitcnt lgkmcnt(0)")
    for i in range(8):
        for jt in range(5):
            a(f"v_mul_f32 v{ct[jt]}, v{ca[jt]}, v{cc[jt]}")
        for jt in range(5):
            a(f"v_fmac_f32_dpp v{ct[jt]}, v{cc[jt]}, v{cb[jt]} {DPP_SWAP}")
        for jt in range(5):
            a(f"v_add_f32 v{ACC+jt*8+i}, v{ACC+jt*8+i}, v{ct[jt]}")
        cc, ct = ct, cc
    a(f"s_mov_b32 s{s_t0}, 0")
    o8 = list(range(56, 64))
    for jt in range(5):
        ob = 12 if (jt & 1) == 0 else 2
        for i in range(8):
            a(f"v_mul_f32 v{o8[i]}, v{ka[jt]}, v{ACC+jt*8+i}")
        for i in range(8):
            a(f"v_fmac_f32_dpp v{o8[i]}, v{ACC+jt*8+i}, v{kb[jt]} {DPP_SWAP}")
        for pr in range(4):
            a(f"v_cvt_pk_bf16_f32 v{ob+pr}, v{o8[2*pr]}, v{o8[2*pr+1]}")
        a(f"buffer_store_dwordx4 v[{ob}:{ob+3}], v{vSt}, s[{SWS}:{SWS+3}], s{s_t0} offen sc1")
        if jt < 4:
            a(f"s_add_u32 s{s_t0}, s{s_t0}, {8*128}")

    AC2 = 48
    ACA = 68
    vxr = list(range(88, 98))
    vds = list(range(98, 108))
    v_g = 108
    v2rA = 16
    v2rB = [17, 18, 19, 20]

    def acc2(n):
        return f"v[{AC2+4*n}:{AC2+4*n+3}]"

    def fa2(q, s):
        return q * 48 + s * 24

    def fb2(q, s, n):
        return q * 48 + s * 24 + 4 + n * 4
    a("s_nop 1")
    a(f"v_and_b32 {t0}, 15, {L}")
    a(f"v_lshrrev_b32 {t1}, 4, {L}")
    a(f"v_lshrrev_b32 {t2}, 2, {t0}")
    a(f"v_lshl_add_u32 {t3}, {t1}, 3, {t2}")
    a(f"v_lshlrev_b32 {t3}, 7, {t3}")
    a(f"v_bfe_u32 {t4}, {t2}, 1, 1")
    a(f"v_and_b32 {t5}, 1, {t1}")
    a(f"v_lshl_add_u32 {t4}, {t5}, 1, {t4}")
    a(f"v_xor_b32 {t4}, s{s_w}, {t4}")
    a(f"v_lshl_add_u32 {t3}, {t4}, 5, {t3}")
    a(f"v_and_b32 {t4}, 3, {t0}")
    a(f"v_lshl_add_u32 v{v2rA}, {t4}, 3, {t3}")
    a(f"v_lshlrev_b32 {t3}, 8, {t0}")
    a(f"v_add_u32 {t3}, {OB2}, {t3}")
    for s in range(4):
        a(f"v_add_u32 {t4}, {4*s}, {t1}")
        a(f"v_xor_b32 {t4}, {t4}, {t0}")
        a(f"v_lshl_add_u32 v{v2rB[s]}, {t4}, 4, {t3}")
    a(f"s_mov_b32 s{s_rd}, 0")
    for r in range(20):
        a(f"v_mov_b32 v{AC2+r}, 0")
    srd(a, SOUT, 10, 5242880)
    a.stamp(6)
    a(f"s_lshl_b32 s{s_t0}, s{s_mt}, 6")
    a(f"s_lshl_b32 s{s_t1}, s{s_w}, 4")
    a(f"s_add_u32 s{s_t0}, s{s_t0}, s{s_t1}")
    a(f"v_and_b32 {t0}, 15, {L}")
    a(f"v_add_u32 {t0}, s{s_t0}, {t0}")
    v_t, v_d = 32, 33
    a(f"v_mov_b32 v{v_t}, {t0}")
    a(f"s_mul_i32 s{s_t1}, s{s_nt}, 80")
    a(f"v_lshrrev_b32 {t1}, 4, {L}")
    a(f"v_lshlrev_b32 {t1}, 2, {t1}")
    a(f"v_add_u32 v{v_d}, s{s_t1}, {t1}")
    a(f"v_mul_u32_u24 {t2}, 1280, {t0}")
    a(f"v_lshl_add_u32 {t2}, v{v_d}, 1, {t2}")
    a(f"v_lshlrev_b32 {t3}, 1, v{v_d}")
    for jt in range(5):
        a(f"global_load_dwordx2 v[{vxr[2*jt]}:{vxr[2*jt+1]}], {t2}, s[16:17] offset:{32*jt}")
        a(f"global_load_dwordx2 v[{vds[2*jt]}:{vds[2*jt+1]}], {t3}, s[8:9] offset:{32*jt}")

    def reads2(q, half):
        g = []
        for s2 in range(2):
            s = half * 2 + s2
            b = fa2(q, s2)
            for h in range(2):
                g.append([f"ds_read_b64_tr_b16 a[{b+2*h}:{b+2*h+1}], v{v2rA} offset:{s*4096 + h*512}"])
            for n in range(5):
                b = fb2(q, s2, n)
                g.append([f"ds_read_b128 a[{b}:{b+3}], v{v2rB[s]} offset:{n*4096}"])
        return g

    def mfmas2(q):
        m = []
        for s2 in range(2):
            for n in range(5):
                A = fa2(q, s2)
                B = fb2(q, s2, n)
                m.append(f"v_mfma_f32_16x16x32_bf16 {acc2(n)}, a[{B}:{B+3}], a[{A}:{A+3}], {acc2(n)}")
        return m

    def addr_update2():
        g = [[f"s_add_u32 s{s_t1}, s{s_rd}, {BUF2}",
              f"s_cmp_ge_u32 s{s_t1}, {NBUF*BUF2}",
              f"s_cselect_b32 s{s_t1}, 0, s{s_t1}",
              f"s_sub_u32 s{s_t2}, s{s_t1}, s{s_rd}",
              f"s_mov_b32 s{s_rd}, s{s_t1}"]]
        for r in [v2rA] + v2rB:
            g.append([f"v_add_u32 v{r}, s{s_t2}, v{r}"])
        return g

    a("s_barrier")
    a.stamp(7)
    emit(a, reads2(0, 0))

    def body2(last):
        a("s_waitcnt lgkmcnt(0)")
        front(a, mfmas2(0), reads2(1, 1), FP2)
        if not last:
            a("s_waitcnt lgkmcnt(0)")
            a("s_barrier")
            front(a, mfmas2(1), addr_update2() + reads2(0, 0), FP2)
        else:
            a("s_waitcnt lgkmcnt(0)")
            interleave(a, mfmas2(1), [])

    a(f"s_mov_b32 s{s_c}, 0")
    a.label("k2_loop")
    body2(False)
    a(f"s_add_u32 s{s_c}, s{s_c}, 1")
    a(f"s_cmp_eq_u32 s{s_c}, 2")
    a("s_cbranch_scc0 k2_nohtag")
    a("s_waitcnt vmcnt(0)")
    a(f"v_mov_b32 v30, 1")
    a(f"v_mov_b32 v31, 0")
    a("s_mov_b64 exec, 1")
    a(f"buffer_store_dword v30, v31, s[{SWS}:{SWS+3}], s83 offen offset:16 sc1")
    a("s_mov_b64 exec, -1")
    a.label("k2_nohtag")
    a(f"s_cmp_eq_u32 s{s_c}, 12")
    a("s_cbranch_scc0 k2_nosw")
    a.nop(10)
    for r in range(20):
        a(f"v_mov_b32 v{ACA+r}, v{AC2+r}")
    for r in range(20):
        a(f"v_mov_b32 v{AC2+r}, 0")
    a("s_nop 1")
    a.label("k2_nosw")
    a(f"s_cmp_eq_u32 s{s_c}, 16")
    a("s_cbranch_scc0 k2_nog")
    a(f"v_lshlrev_b32 {t4}, 2, v{v_t}")
    a(f"v_add_u32 {t4}, {WS_G:#x}, {t4}")
    a(f"buffer_load_dword v{v_g}, {t4}, s[{SWS}:{SWS+3}], 0 offen sc1")
    a.label("k2_nog")
    a(f"s_cmp_lt_u32 s{s_c}, 21")
    a("s_cbranch_scc1 k2_loop")
    body2(True)
    a.nop(10)
    g = f"v{v_g}"
    omg = "v34"
    a("s_waitcnt vmcnt(0)")
    a(f"v_sub_f32 {omg}, 1.0, {g}")
    a(f"v_cvt_pk_bf16_f32 {omg}, {omg}, {omg}")
    a(f"v_lshlrev_b32 {omg}, 16, {omg}")
    a(f"v_mul_u32_u24 {t0}, 2560, v{v_t}")
    a(f"v_lshl_add_u32 {t0}, v{v_d}, 2, {t0}")
    u = [f"v{x}" for x in range(36, 46)]
    for jt in range(5):
        for pr in range(2):
            xr = f"v{vxr[2*jt+pr]}"
            dr = f"v{vds[2*jt+pr]}"
            a(f"v_lshlrev_b32 {u[0]}, 16, {xr}")
            a(f"v_and_b32 {u[1]}, 0xffff0000, {xr}")
            a(f"v_lshlrev_b32 {u[2]}, 16, {dr}")
            a(f"v_and_b32 {u[3]}, 0xffff0000, {dr}")
            a(f"v_mul_f32 {u[0]}, {u[0]}, {u[2]}")
            a(f"v_mul_f32 {u[1]}, {u[1]}, {u[3]}")
            a(f"v_cvt_pk_bf16_f32 {u[0]}, {u[0]}, {u[1]}")
            a(f"v_lshlrev_b32 {u[1]}, 16, {u[0]}")
            a(f"v_and_b32 {u[0]}, 0xffff0000, {u[0]}")
            a0 = f"v{AC2+4*jt+2*pr}"
            a1 = f"v{AC2+4*jt+2*pr+1}"
            b0 = f"v{ACA+4*jt+2*pr}"
            b1 = f"v{ACA+4*jt+2*pr+1}"
            a(f"v_add_f32 {a0}, {a0}, {u[1]}")
            a(f"v_add_f32 {a1}, {a1}, {u[0]}")
            a(f"v_cvt_pk_bf16_f32 {u[2]}, {b0}, {b1}")
            a(f"v_lshlrev_b32 {u[3]}, 16, {u[2]}")
            a(f"v_and_b32 {u[2]}, 0xffff0000, {u[2]}")
            a(f"v_mul_f32 {u[3]}, {omg}, {u[3]}")
            a(f"v_mul_f32 {u[2]}, {omg}, {u[2]}")
            a(f"v_cvt_pk_bf16_f32 {u[2]}, {u[3]}, {u[2]}")
            a(f"v_lshlrev_b32 {u[3]}, 16, {u[2]}")
            a(f"v_and_b32 {u[2]}, 0xffff0000, {u[2]}")
            a(f"v_mul_f32 {a0}, {g}, {a0}")
            a(f"v_mul_f32 {a1}, {g}, {a1}")
            a(f"v_add_f32 {a0}, {a0}, {u[3]}")
            a(f"v_add_f32 {a1}, {a1}, {u[2]}")
        a(f"buffer_store_dwordx4 v[{AC2+4*jt}:{AC2+4*jt+3}], {t0}, s[{SOUT}:{SOUT+3}], 0 offen offset:{64*jt}")
    a.stamp(8)
    a.stamp_flush(SWS, 0xF00000, 9, 24, 25, s_w)
    a.label("k_end")
    a("s_endpgm")
    return dict(lds=LDS, nv=NV, na=104)


def generate(opt):
    a = Asm(); a.instr = bool(opt.get("instr", 0))
    info = gen(a, opt)
    if opt.get("noload", 0):
        a.lines = [l for l in a.lines if not (" lds" in l and "buffer_load" in l)]
    if opt.get("nocomp", 0):
        a.lines = [l for l in a.lines if not ("v_mfma" in l or ("ds_read" in l and " a[" in l))]
    out = HEADER
    out += f"; @launch grid=(256,1,1) block=(512,1,1) lds={info['lds']}\n"
    out += '.amdgcn_target "amdgcn-amd-amdhsa--gfx950"\n.text\n'
    out += f".globl {KN}\n.p2align 8\n.type {KN},@function\n"
    out += a.text()
    acc_off = (info["nv"] + 3) // 4 * 4
    out += f""".section .rodata,"a"
.p2align 6
.amdhsa_kernel {KN}
  .amdhsa_next_free_vgpr {acc_off + info['na']}
  .amdhsa_next_free_sgpr 102
  .amdhsa_accum_offset {acc_off}
  .amdhsa_group_segment_fixed_size 0
  .amdhsa_kernarg_size 136
  .amdhsa_user_sgpr_count 2
  .amdhsa_user_sgpr_kernarg_segment_ptr 1
  .amdhsa_system_sgpr_workgroup_id_x 1
.end_amdhsa_kernel
"""
    return out


if __name__ == "__main__":
    opt = {}
    outp = "cdna_kernels/" + NAME + ".s"
    for arg in sys.argv[1:]:
        if arg.startswith("-o="):
            outp = arg[3:]
        else:
            k, v = arg.split("=")
            opt[k] = int(v)
    open(outp, "w").write(generate(opt))
    print("wrote", outp)
```
